```python
import torch

def _softmax(x, axis=-1):
    return torch.softmax(x, dim=axis)

def _gelu(x):
    return torch.nn.functional.gelu(x, approximate='tanh')

def _silu(x):
    return torch.nn.functional.silu(x)

def _sigmoid(x):
    return torch.sigmoid(x)

def _layernorm(x, axis=-1, eps=1e-05):
    m = x.mean(dim=axis, keepdim=True)
    v = x.var(dim=axis, keepdim=True, unbiased=False)
    return (x - m) / torch.sqrt(v + eps)

def _scatter_add(tgt, idx, src, axis=0):
    return tgt.clone().index_add_(axis, idx, src)

def _segment_sum(src, seg, n):
    out = torch.zeros((n,) + src.shape[1:], dtype=src.dtype)
    return out.index_add_(0, seg, src)

def _pad(x, pw):
    flat = tuple((v for pair in reversed(pw) for v in pair))
    return torch.nn.functional.pad(x, flat)
kernel_name = 'sequential_preLN__ssm_conv_s4__mixer_gmlp__prompt'

def setup_inputs():

    _w = lambda a: (lambda t: t.to(torch.bfloat16) if t.is_floating_point() else t)(torch.as_tensor(a))

    def _A_setup():
        B, L, D, N = (1, 2048, 448, 256)
        A_re = -(lambda _x: torch.exp(torch.as_tensor(_x)))((lambda *s: torch.randn(*s, dtype=torch.bfloat16) * 3.2)(D, N))
        A_im = torch.pi * (lambda *s: torch.randn(*s, dtype=torch.bfloat16) * 0.05)(D, N)
        B_re = (lambda *s: torch.randn(*s, dtype=torch.bfloat16) * 0.05)(D, N)
        B_im = (lambda *s: torch.randn(*s, dtype=torch.bfloat16) * 0.05)(D, N)
        C_re = (lambda *s: torch.randn(*s, dtype=torch.bfloat16) * 0.05)(D, N)
        C_im = (lambda *s: torch.randn(*s, dtype=torch.bfloat16) * 0.05)(D, N)
        log_dt = (lambda *s: torch.randn(*s, dtype=torch.bfloat16) * 0.05)(D) * 0.5 - 4.0
        Dskip = (lambda *s: torch.randn(*s, dtype=torch.bfloat16) * 0.05)(D)
        return {'u': _w((lambda *s: torch.randn(*s, dtype=torch.bfloat16) * 0.05)(B, L, D)), 'A_re': _w(A_re), 'A_im': _w(A_im), 'B_re': _w(B_re), 'B_im': _w(B_im), 'C_re': _w(C_re), 'C_im': _w(C_im), 'log_dt': _w(log_dt), 'Dskip': _w(Dskip)}
    _A_in = _A_setup()

    def _B_setup():
        B, S, D, F = (1, 2048, 448, 1792)
        Fh = F // 2
        return {'x': _w((lambda *s: torch.randn(*s, dtype=torch.bfloat16) * 0.05)(B, S, D)), 'w_in': _w((lambda *s: torch.randn(*s, dtype=torch.bfloat16) * 0.4)(D, 2 * Fh)), 'w_sp': _w(0.01 * (lambda *s: torch.randn(*s, dtype=torch.bfloat16) * 0.4)(S, S)), 'b_sp': _w(1.0 + 0.01 * (lambda *s: torch.randn(*s, dtype=torch.bfloat16) * 0.05)(S)), 'w_out': _w((lambda *s: torch.randn(*s, dtype=torch.bfloat16) * 0.05)(Fh, D))}
    _B_in = _B_setup()
    return {'A_u': _A_in['u'], 'A_A_re': _A_in['A_re'], 'A_A_im': _A_in['A_im'], 'A_B_re': _A_in['B_re'], 'A_B_im': _A_in['B_im'], 'A_C_re': _A_in['C_re'], 'A_C_im': _A_in['C_im'], 'A_log_dt': _A_in['log_dt'], 'A_Dskip': _A_in['Dskip'], 'B_x': _B_in['x'], 'B_w_in': _B_in['w_in'], 'B_w_sp': _B_in['w_sp'], 'B_b_sp': _B_in['b_sp'], 'B_w_out': _B_in['w_out']}

def reference(A_u, A_A_re, A_A_im, A_B_re, A_B_im, A_C_re, A_C_im, A_log_dt, A_Dskip, B_x, B_w_in, B_w_sp, B_b_sp, B_w_out):

    def _A_ref(u, A_re, A_im, B_re, B_im, C_re, C_im, log_dt, Dskip):
        Bsz, L, D = u.shape
        dt = torch.exp(log_dt)[:, None]
        A = A_re + 1j * A_im
        Bc = B_re + 1j * B_im
        Cc = C_re + 1j * C_im
        logdA = dt * A
        dB = dt * Bc
        l = (lambda x, dt: x.to(dt))(torch.arange(L), A_re.dtype)
        P = torch.exp(logdA[:, :, None] * l[None, None, :])
        K = torch.einsum('dn,dnl,dn->dl', Cc, P, dB).real
        L2 = 2 * L
        Kp = _pad(K, ((0, 0), (0, L)))
        up = (lambda x, *d: x.permute(*d))(u, 0, 2, 1)
        up = _pad(up, ((0, 0), (0, 0), (0, L)))
        Kf = (lambda x, axes=(-2, -1): torch.fft.rfft2(x.float(), dim=axes))(Kp[:, None, :], axes=(-2, -1))
        Uf = (lambda x, axes=(-2, -1): torch.fft.rfft2(x.float(), dim=axes))(up[:, :, None, :], axes=(-2, -1))
        Yf = Uf * Kf[None, :, :, :]
        y = (lambda x, s, axes=(-2, -1): torch.fft.irfft2(x, s=s, dim=axes).to(torch.bfloat16))(Yf, (1, L2), axes=(-2, -1))[:, :, 0, :L]
        y = (lambda x, *d: x.permute(*d))(y, 0, 2, 1) + u * Dskip[None, None, :]
        return y

    def _B_ref(x, w_in, w_sp, b_sp, w_out):
        B, S, D = x.shape
        F = w_in.shape[-1]
        Fh = F // 2
        z = _gelu(torch.einsum('bsd,df->bsf', x, w_in))
        z1 = z[..., :Fh].clone()
        z2 = _layernorm(z[..., Fh:], axis=-1)
        g = torch.einsum('ts,bsf->btf', w_sp, z2) + b_sp[None, :, None]
        return torch.einsum('bsf,fd->bsd', z1 * g, w_out)
    x = A_u
    h = x + _A_ref(_layernorm(x, axis=-1), A_A_re, A_A_im, A_B_re, A_B_im, A_C_re, A_C_im, A_log_dt, A_Dskip)
    h2 = h + _B_ref(_layernorm(h, axis=-1), B_w_in, B_w_sp, B_b_sp, B_w_out)
    return h2
```

```python
import struct
def f2u(x): return struct.unpack("<I", struct.pack("<f", x))[0]
def hx(x): return "0x%08x" % (x & 0xffffffff)
def fl(x): return hx(f2u(x))

KARG = dict(u=0, Are=8, Aim=16, Bre=24, Bim=32, Cre=40, Cim=48, logdt=56, Dskip=64, Bx=72,
            win=80, wsp=88, bsp=96, wout=104, out=112, dbg=120, ws=128)
SIZES = dict(u=2048*448*2, Are=448*256*2, Aim=448*256*2, Bre=448*256*2, Bim=448*256*2, Cre=448*256*2, Cim=448*256*2,
             logdt=896, Dskip=896, Bx=2048*448*2, win=448*1792*2, wsp=2048*2048*2, bsp=4096, wout=896*448*2,
             out=2048*448*2, dbg=256, ws=268435456)

class K:
    def __init__(self, name, vgpr=128, agpr=0, sgpr=96):
        self.name=name; self.vgpr=vgpr; self.agpr=agpr; self.sgpr=sgpr; self.L=[]; self.nlab=0
    def __call__(self, s):
        for line in s.rstrip("\n").split("\n"):
            line=line.strip()
            if not line: continue
            if line.endswith(":") : self.L.append(line)
            else: self.L.append("    "+line)
    def lab(self, base="L"):
        self.nlab+=1; return f"{base}_{self.name}_{self.nlab}"
    def text(self):
        return f".globl {self.name}\n.p2align 8\n.type {self.name},@function\n{self.name}:\n" + "\n".join(self.L) + "\n"
    def kd(self):
        acc = (self.vgpr+3)//4*4
        nfv = acc + self.agpr if self.agpr else self.vgpr
        return f""".p2align 6
.amdhsa_kernel {self.name}
  .amdhsa_next_free_vgpr {nfv}
  .amdhsa_next_free_sgpr {self.sgpr}
  .amdhsa_accum_offset {acc}
  .amdhsa_group_segment_fixed_size 0
  .amdhsa_kernarg_size 136
  .amdhsa_user_sgpr_count 2
  .amdhsa_user_sgpr_kernarg_segment_ptr 1
  .amdhsa_system_sgpr_workgroup_id_x 1
  .amdhsa_float_denorm_mode_32 3
.end_amdhsa_kernel
"""
    def srd(self, d, p, n, off=0):
        if off:
            self(f"s_add_u32 s{d}, s{p}, {off}\ns_addc_u32 s{d+1}, s{p+1}, 0")
        else:
            self(f"s_mov_b32 s{d}, s{p}\ns_mov_b32 s{d+1}, s{p+1}")
        self(f"s_mov_b32 s{d+2}, {n}\ns_mov_b32 s{d+3}, 0x00020000")

HEADER = open("sequential_preLN__ssm_conv_s4__mixer_gmlp__prompt.s.ref").read().split("; Override launch")[0] if __import__("os").path.exists("sequential_preLN__ssm_conv_s4__mixer_gmlp__prompt.s.ref") else ""

def emit(path, kernels, launches):
    s = HEADER
    for (name, grid, block, lds) in launches:
        s += f"; @launch kernel={name} grid=({grid},1,1) block=({block},1,1) lds={lds}\n"
    s += '.amdgcn_target "amdgcn-amd-amdhsa--gfx950"\n.text\n'
    for k in kernels: s += k.text()
    s += '.section .rodata,"a"\n'
    for k in kernels: s += k.kd()
    open(path,"w").write(s)
```

```python
import sys, math
from asmgen import *
WS_U=0; WS_KT=WS_U+2048*448*2; WS_H=WS_KT+2048*448*4; WS_HN=WS_H+2048*448*2; WS_Z=WS_HN+2048*448*2
WS_Z2=WS_Z+2048*1792*2; WS_G=WS_Z2+2048*896*2; WS_END=WS_G+2048*896*2
MIMIC = int(sys.argv[2]) if len(sys.argv)>2 else 1
NEMPTY = int(sys.argv[3]) if len(sys.argv)>3 else 0

def rnd(k, v):
    k(f"v_cvt_pk_bf16_f32 v{v}, v{v}, v{v}\nv_and_b32 v{v}, 0xffff0000, v{v}")

def wave_sum(k, v, sdst):
    for c in ["row_shr:1","row_shr:2","row_shr:4","row_shr:8"]:
        k(f"s_nop 1\nv_add_f32_dpp v{v}, v{v}, v{v} {c} row_mask:0xf bank_mask:0xf bound_ctrl:0")
    k(f"s_nop 1\nv_add_f32_dpp v{v}, v{v}, v{v} row_bcast:15 row_mask:0xa bank_mask:0xf")
    k(f"s_nop 1\nv_add_f32_dpp v{v}, v{v}, v{v} row_bcast:31 row_mask:0xc bank_mask:0xf")
    k(f"s_nop 1\nv_readlane_b32 s{sdst}, v{v}, 63\ns_nop 3")

def ln_kernel(name, src, srcoff, srcld, R, dstoff):
    k=K(name, vgpr=64)
    n=R//64
    k(f"s_cmp_ge_u32 s2, 512\ns_cbranch_scc1 END_{name}")
    k(f"s_load_dwordx2 s[4:5], s[0:1], {KARG[src]}\ns_load_dwordx2 s[6:7], s[0:1], {KARG['ws']}\ns_waitcnt lgkmcnt(0)")
    k.srd(8,4, 2048*srcld, srcoff); k.srd(12,6, 2048*R*2, dstoff)
    k(f"""v_lshrrev_b32 v1, 6, v0
    v_and_b32 v2, 63, v0
    s_lshl_b32 s3, s2, 2
    v_add_u32 v1, s3, v1
    s_mov_b32 s16, {srcld}
    v_mul_lo_u32 v3, v1, s16
    v_lshl_add_u32 v3, v2, 1, v3
    s_mov_b32 s16, {R*2}
    v_mul_lo_u32 v4, v1, s16
    v_lshl_add_u32 v4, v2, 1, v4""")
    for i in range(n): k(f"buffer_load_ushort v{10+i}, v3, s[8:11], 0 offen offset:{i*128}")
    k("s_waitcnt vmcnt(0)")
    for i in range(n): k(f"v_lshlrev_b32 v{10+i}, 16, v{10+i}")
    k("v_mov_b32 v5, 0")
    for i in range(n): k(f"v_add_f32 v5, v5, v{10+i}")
    wave_sum(k,5,20)
    k(f"v_mov_b32 v6, s20\nv_mul_f32 v6, {fl(1.0/R)}, v6")
    k("v_mov_b32 v5, 0")
    for i in range(n): k(f"v_sub_f32 v7, v{10+i}, v6\nv_fmac_f32 v5, v7, v7")
    wave_sum(k,5,20)
    k(f"v_mov_b32 v8, s20\nv_mul_f32 v8, {fl(1.0/R)}, v8")
    if MIMIC: rnd(k,6); rnd(k,8)
    k(f"v_add_f32 v8, {fl(1e-5)}, v8")
    if MIMIC: rnd(k,8)
    k("v_sqrt_f32 v8, v8\ns_nop 1")
    if MIMIC: rnd(k,8)
    k("v_rcp_f32 v8, v8\ns_nop 1")
    for i in range(n):
        k(f"v_sub_f32 v7, v{10+i}, v6")
        if MIMIC: rnd(k,7)
        k(f"v_mul_f32 v7, v7, v8\nv_cvt_pk_bf16_f32 v{30+i}, v7, v7\nbuffer_store_short v{30+i}, v4, s[12:15], 0 offen offset:{i*128}")
    k(f"s_waitcnt vmcnt(0)\nEND_{name}:\ns_endpgm")
    return k

def kgen_kernel():
    name="kgen_kernel"; k=K(name, vgpr=64)
    k(f"s_cmp_ge_u32 s2, {448*8}\ns_cbranch_scc1 END_{name}")
    k(f"""s_load_dwordx4 s[4:7], s[0:1], 8
    s_load_dwordx4 s[8:11], s[0:1], 24
    s_load_dwordx4 s[12:15], s[0:1], 40
    s_load_dwordx2 s[16:17], s[0:1], 56
    s_load_dwordx2 s[18:19], s[0:1], 128
    s_waitcnt lgkmcnt(0)""")
    for i,p in enumerate([4,6,8,10,12,14]): k.srd(20+4*i, p, 448*256*2)
    k.srd(44,16,896); k.srd(48,18,2048*448*4, WS_KT)
    k(f"""s_lshr_b32 s52, s2, 3
    s_and_b32 s53, s2, 7
    s_lshl_b32 s53, s53, 8
    v_add_u32 v1, s53, v0
    v_cvt_f32_u32 v2, v1""")
    rnd(k,2)
    k(f"""s_lshl_b32 s54, s52, 1
    v_mov_b32 v3, s54
    buffer_load_ushort v4, v3, s[44:47], 0 offen
    s_waitcnt vmcnt(0)
    v_lshlrev_b32 v4, 16, v4
    v_mul_f32 v4, {fl(math.log2(math.e))}, v4
    v_exp_f32 v4, v4
    s_nop 1""")
    rnd(k,4)
    k(f"""s_lshl_b32 s54, s52, 9
    v_mov_b32 v3, s54
    v_mov_b32 v5, 0
    s_mov_b32 s55, 0
LOOP_{name}:""")
    for i in range(6): k(f"buffer_load_ushort v{10+i}, v3, s[{20+4*i}:{23+4*i}], 0 offen")
    k("s_waitcnt vmcnt(0)")
    for i in range(6): k(f"v_lshlrev_b32 v{10+i}, 16, v{10+i}")
    k(f"""v_mul_f32 v10, v10, v4
    v_mul_f32 v11, v11, v4
    v_mul_f32 v12, v12, v4
    v_mul_f32 v13, v13, v4
    v_mul_f32 v16, v14, v12
    v_fma_f32 v16, -v15, v13, v16
    v_mul_f32 v17, v14, v13
    v_fma_f32 v17, v15, v12, v17
    v_mul_f32 v10, v10, v2
    v_mul_f32 v11, v11, v2
    v_mul_f32 v10, {fl(math.log2(math.e))}, v10
    v_mul_f32 v11, {fl(1/(2*math.pi))}, v11
    v_fract_f32 v11, v11
    v_exp_f32 v10, v10
    v_cos_f32 v18, v11
    v_sin_f32 v19, v11
    s_nop 1
    v_mul_f32 v18, v18, v16
    v_fma_f32 v18, -v19, v17, v18
    v_fmac_f32 v5, v18, v10
    v_add_u32 v3, 2, v3
    s_add_u32 s55, s55, 1
    s_cmp_lt_u32 s55, 256
    s_cbranch_scc1 LOOP_{name}
    s_movk_i32 s56, {448*4}
    v_mul_lo_u32 v6, v1, s56
    s_lshl_b32 s54, s52, 2
    v_add_u32 v6, s54, v6
    buffer_store_dword v5, v6, s[48:51], 0 offen
    s_waitcnt vmcnt(0)
END_{name}:
    s_endpgm""")
    return k

def conv_kernel():
    name="conv_kernel"; k=K(name, vgpr=64)
    k(f"s_cmp_ge_u32 s2, {2048*7//4}\ns_cbranch_scc1 END_{name}")
    k(f"""s_load_dwordx2 s[4:5], s[0:1], 0
    s_load_dwordx2 s[6:7], s[0:1], 64
    s_load_dwordx2 s[8:9], s[0:1], 128
    s_waitcnt lgkmcnt(0)""")
    k.srd(12,4,2048*448*2); k.srd(16,6,896); k.srd(20,8,2048*448*2,WS_U); k.srd(24,8,2048*448*4,WS_KT); k.srd(28,8,2048*448*2,WS_H)
    k(f"""v_lshrrev_b32 v1, 6, v0
    s_nop 0
    v_readfirstlane_b32 s32, v1
    s_lshl_b32 s33, s2, 2
    s_add_u32 s32, s32, s33
    s_mov_b32 s34, {(2**32+6)//7}
    s_mul_hi_u32 s35, s32, s34
    s_mul_i32 s36, s35, 7
    s_sub_u32 s36, s32, s36
    v_and_b32 v2, 63, v0
    s_lshl_b32 s36, s36, 6
    v_add_u32 v2, s36, v2
    s_mul_i32 s37, s35, 896
    v_lshlrev_b32 v3, 1, v2
    v_add_u32 v4, s37, v3
    v_mov_b32 v7, v4
    v_lshlrev_b32 v5, 2, v2
    v_mov_b32 v6, 0
    s_mov_b32 s38, 0
LOOP_{name}:
    buffer_load_ushort v10, v7, s[20:23], 0 offen
    buffer_load_dword v11, v5, s[24:27], 0 offen
    v_subrev_u32 v7, 896, v7
    v_add_u32 v5, {448*4}, v5
    s_waitcnt vmcnt(0)
    v_lshlrev_b32 v10, 16, v10
    v_fmac_f32 v6, v10, v11
    s_add_u32 s38, s38, 1
    s_cmp_le_u32 s38, s35
    s_cbranch_scc1 LOOP_{name}
    buffer_load_ushort v10, v4, s[20:23], 0 offen
    buffer_load_ushort v11, v4, s[12:15], 0 offen
    buffer_load_ushort v12, v3, s[16:19], 0 offen
    s_waitcnt vmcnt(0)
    v_lshlrev_b32 v10, 16, v10
    v_lshlrev_b32 v11, 16, v11
    v_lshlrev_b32 v12, 16, v12
    v_mul_f32 v10, v10, v12""")
    if MIMIC: rnd(k,10); rnd(k,6)
    k("v_add_f32 v6, v6, v10")
    if MIMIC: rnd(k,6)
    k(f"""v_add_f32 v6, v6, v11
    v_cvt_pk_bf16_f32 v6, v6, v6
    buffer_store_short v6, v4, s[28:31], 0 offen
    s_waitcnt vmcnt(0)
END_{name}:
    s_endpgm""")
    return k

def gemm_kernel(name, A, Aoff, lda, B, Boff, N, Kd, epi):
    k=K(name, vgpr=64)
    nch=N//64
    k(f"s_cmp_ge_u32 s2, {2048*nch//4}\ns_cbranch_scc1 END_{name}")
    k(f"""s_load_dwordx2 s[4:5], s[0:1], {KARG[A]}
    s_load_dwordx2 s[6:7], s[0:1], {KARG[B]}
    s_load_dwordx2 s[8:9], s[0:1], 128
    s_load_dwordx2 s[10:11], s[0:1], {KARG['bsp']}
    s_load_dwordx2 s[40:41], s[0:1], {KARG['out']}
    s_waitcnt lgkmcnt(0)""")
    k.srd(12,4,2048*lda,Aoff); k.srd(16,6,Kd*N*2,Boff)
    k(f"""v_lshrrev_b32 v1, 6, v0
    s_nop 0
    v_readfirstlane_b32 s32, v1
    s_lshl_b32 s33, s2, 2
    s_add_u32 s32, s32, s33
    s_mov_b32 s34, {(2**32+nch-1)//nch}
    s_mul_hi_u32 s35, s32, s34
    s_mul_i32 s36, s35, {nch}
    s_sub_u32 s36, s32, s36
    v_and_b32 v2, 63, v0
    s_lshl_b32 s36, s36, 6
    v_add_u32 v2, s36, v2
    s_mul_i32 s37, s35, {lda}
    v_mov_b32 v4, s37
    v_lshlrev_b32 v5, 1, v2
    v_mov_b32 v6, 0
    s_mov_b32 s38, 0
LOOP_{name}:
    buffer_load_dwordx4 v[8:11], v4, s[12:15], 0 offen""")
    for i in range(8):
        k(f"buffer_load_ushort v{12+i}, v5, s[16:19], 0 offen\nv_add_u32 v5, {N*2}, v5")
    k("v_add_u32 v4, 16, v4\ns_waitcnt vmcnt(0)")
    for i in range(8):
        if i%2==0: k(f"v_lshlrev_b32 v20, 16, v{8+i//2}")
        else: k(f"v_and_b32 v20, 0xffff0000, v{8+i//2}")
        k(f"v_lshlrev_b32 v21, 16, v{12+i}\nv_fmac_f32 v6, v20, v21")
    k(f"""s_add_u32 s38, s38, 8
    s_cmp_lt_u32 s38, {Kd}
    s_cbranch_scc1 LOOP_{name}""")
    if MIMIC: rnd(k,6)
    k(f"s_mul_i32 s37, s35, {N*2}\nv_lshlrev_b32 v5, 1, v2\nv_add_u32 v5, s37, v5")
    if epi=="gelu":
        c = -2*math.sqrt(2/math.pi)*math.log2(math.e)
        k.srd(20,8,2048*1792*2,WS_Z)
        k(f"""v_mul_f32 v7, v6, v6
        v_mov_b32 v9, {fl(c)}
        v_fmamk_f32 v7, v7, {fl(c*0.044715)}, v9
        v_mul_f32 v7, v7, v6
        v_exp_f32 v7, v7
        s_nop 1
        v_add_f32 v7, 1.0, v7
        v_rcp_f32 v7, v7
        s_nop 1
        v_mul_f32 v6, v6, v7""")
    elif epi=="gate":
        k.srd(20,8,2048*896*2,WS_G); k.srd(24,10,4096); k.srd(28,8,2048*1792*2,WS_Z)
        k(f"""s_lshl_b32 s39, s35, 1
        v_mov_b32 v7, s39
        buffer_load_ushort v8, v7, s[24:27], 0 offen
        s_mul_i32 s39, s35, {1792*2}
        v_lshlrev_b32 v7, 1, v2
        v_add_u32 v7, s39, v7
        buffer_load_ushort v9, v7, s[28:31], 0 offen
        s_waitcnt vmcnt(0)
        v_lshlrev_b32 v8, 16, v8
        v_lshlrev_b32 v9, 16, v9
        v_add_f32 v6, v6, v8""")
        if MIMIC: rnd(k,6)
        k("v_mul_f32 v6, v6, v9")
    else:
        k.srd(20,40,2048*448*2); k.srd(24,8,2048*448*2,WS_H)
        k(f"""buffer_load_ushort v8, v5, s[24:27], 0 offen
        s_waitcnt vmcnt(0)
        v_lshlrev_b32 v8, 16, v8
        v_add_f32 v6, v6, v8""")
    k(f"""v_cvt_pk_bf16_f32 v6, v6, v6
    buffer_store_short v6, v5, s[20:23], 0 offen
    s_waitcnt vmcnt(0)
END_{name}:
    s_endpgm""")
    return k

e=K("empty_kernel", vgpr=32); e("s_endpgm")
ks=[e, ln_kernel("ln1_kernel","u",0,896,448,WS_U), kgen_kernel(), conv_kernel(), ln_kernel("ln2_kernel","ws",WS_H,896,448,WS_HN),
    gemm_kernel("g1_kernel","ws",WS_HN,896,"win",0,1792,448,"gelu"),
    ln_kernel("ln3_kernel","ws",WS_Z+1792,3584,896,WS_Z2),
    gemm_kernel("g2_kernel","wsp",0,4096,"ws",WS_Z2,896,2048,"gate"),
    gemm_kernel("g3_kernel","ws",WS_G,1792,"wout",0,448,896,"res")]
L=[("empty_kernel",256,256,0)]*NEMPTY + [("ln1_kernel",512,256,0),("kgen_kernel",448*8,256,0),("conv_kernel",2048*7//4,256,0),("ln2_kernel",512,256,0),
   ("g1_kernel",2048*28//4,256,0),("ln3_kernel",512,256,0),("g2_kernel",2048*14//4,256,0),("g3_kernel",2048*7//4,256,0)]
if not NEMPTY: ks=ks[1:]
emit(sys.argv[1], ks, L)
```

```python
import sys, math
from asmgen import *
WS_U=0; WS_KT=WS_U+2048*448*2; WS_H=WS_KT+2048*448*4; WS_HN=WS_H+2048*448*2; WS_Z=WS_HN+2048*448*2
WS_Z2=WS_Z+2048*1792*2; WS_G=WS_Z2+2048*896*2; WS_END=WS_G+2048*896*2
MIMIC = int(sys.argv[2]) if len(sys.argv)>2 else 1
SCALE=float(sys.argv[4]) if len(sys.argv)>4 else 1.0
BUMP=float(sys.argv[5]) if len(sys.argv)>5 else 0.0
NEMPTY = int(sys.argv[3]) if len(sys.argv)>3 else 0

def rnd(k, v):
    k(f"v_cvt_pk_bf16_f32 v{v}, v{v}, v{v}\nv_and_b32 v{v}, 0xffff0000, v{v}")

def wave_sum(k, v, sdst):
    for c in ["row_shr:1","row_shr:2","row_shr:4","row_shr:8"]:
        k(f"s_nop 1\nv_add_f32_dpp v{v}, v{v}, v{v} {c} row_mask:0xf bank_mask:0xf bound_ctrl:0")
    k(f"s_nop 1\nv_add_f32_dpp v{v}, v{v}, v{v} row_bcast:15 row_mask:0xa bank_mask:0xf")
    k(f"s_nop 1\nv_add_f32_dpp v{v}, v{v}, v{v} row_bcast:31 row_mask:0xc bank_mask:0xf")
    k(f"s_nop 1\nv_readlane_b32 s{sdst}, v{v}, 63\ns_nop 3")

def ln_kernel(name, src, srcoff, srcld, R, dstoff):
    k=K(name, vgpr=64)
    n=R//64
    k(f"s_cmp_ge_u32 s2, 512\ns_cbranch_scc1 END_{name}")
    k(f"s_load_dwordx2 s[4:5], s[0:1], {KARG[src]}\ns_load_dwordx2 s[6:7], s[0:1], {KARG['ws']}\ns_waitcnt lgkmcnt(0)")
    k.srd(8,4, 2048*srcld, srcoff); k.srd(12,6, 2048*R*2, dstoff)
    k(f"""v_lshrrev_b32 v1, 6, v0
    v_and_b32 v2, 63, v0
    s_lshl_b32 s3, s2, 2
    v_add_u32 v1, s3, v1
    s_mov_b32 s16, {srcld}
    v_mul_lo_u32 v3, v1, s16
    v_lshl_add_u32 v3, v2, 1, v3
    s_mov_b32 s16, {R*2}
    v_mul_lo_u32 v4, v1, s16
    v_lshl_add_u32 v4, v2, 1, v4""")
    for i in range(n): k(f"buffer_load_ushort v{10+i}, v3, s[8:11], 0 offen offset:{i*128}")
    k("s_waitcnt vmcnt(0)")
    for i in range(n): k(f"v_lshlrev_b32 v{10+i}, 16, v{10+i}")
    k("v_mov_b32 v5, 0")
    for i in range(n): k(f"v_add_f32 v5, v5, v{10+i}")
    wave_sum(k,5,20)
    k(f"v_mov_b32 v6, s20\nv_mul_f32 v6, {fl(1.0/R)}, v6")
    k("v_mov_b32 v5, 0")
    for i in range(n): k(f"v_sub_f32 v7, v{10+i}, v6\nv_fmac_f32 v5, v7, v7")
    wave_sum(k,5,20)
    k(f"v_mov_b32 v8, s20\nv_mul_f32 v8, {fl(1.0/R)}, v8")
    if MIMIC: rnd(k,6); rnd(k,8)
    k(f"v_add_f32 v8, {fl(1e-5)}, v8")
    if MIMIC: rnd(k,8)
    k("v_sqrt_f32 v8, v8\ns_nop 1")
    if MIMIC: rnd(k,8)
    k("v_rcp_f32 v8, v8\ns_nop 1")
    for i in range(n):
        k(f"v_sub_f32 v7, v{10+i}, v6")
        if MIMIC: rnd(k,7)
        k(f"v_mul_f32 v7, v7, v8\nv_cvt_pk_bf16_f32 v{30+i}, v7, v7\nbuffer_store_short v{30+i}, v4, s[12:15], 0 offen offset:{i*128}")
    k(f"s_waitcnt vmcnt(0)\nEND_{name}:\ns_endpgm")
    return k

def kgen_kernel():
    name="kgen_kernel"; k=K(name, vgpr=64)
    k(f"s_cmp_ge_u32 s2, {448*8}\ns_cbranch_scc1 END_{name}")
    k(f"""s_load_dwordx4 s[4:7], s[0:1], 8
    s_load_dwordx4 s[8:11], s[0:1], 24
    s_load_dwordx4 s[12:15], s[0:1], 40
    s_load_dwordx2 s[16:17], s[0:1], 56
    s_load_dwordx2 s[18:19], s[0:1], 128
    s_waitcnt lgkmcnt(0)""")
    for i,p in enumerate([4,6,8,10,12,14]): k.srd(20+4*i, p, 448*256*2)
    k.srd(44,16,896); k.srd(48,18,2048*448*4, WS_KT)
    k(f"""s_lshr_b32 s52, s2, 3
    s_and_b32 s53, s2, 7
    s_lshl_b32 s53, s53, 8
    v_add_u32 v1, s53, v0
    v_cvt_f32_u32 v2, v1""")
    rnd(k,2)
    k(f"""s_lshl_b32 s54, s52, 1
    v_mov_b32 v3, s54
    buffer_load_ushort v4, v3, s[44:47], 0 offen
    s_waitcnt vmcnt(0)
    v_lshlrev_b32 v4, 16, v4
    v_mul_f32 v4, {fl(math.log2(math.e))}, v4
    v_exp_f32 v4, v4
    s_nop 1""")
    rnd(k,4)
    k(f"""s_lshl_b32 s54, s52, 9
    v_mov_b32 v3, s54
    v_mov_b32 v5, 0
    s_mov_b32 s55, 0
LOOP_{name}:""")
    for i in range(6): k(f"buffer_load_ushort v{10+i}, v3, s[{20+4*i}:{23+4*i}], 0 offen")
    k("s_waitcnt vmcnt(0)")
    for i in range(6): k(f"v_lshlrev_b32 v{10+i}, 16, v{10+i}")
    k(f"""v_mul_f32 v10, v10, v4
    v_mul_f32 v11, v11, v4
    v_mul_f32 v12, v12, v4
    v_mul_f32 v13, v13, v4
    v_mul_f32 v16, v14, v12
    v_fma_f32 v16, -v15, v13, v16
    v_mul_f32 v17, v14, v13
    v_fma_f32 v17, v15, v12, v17
    v_mul_f32 v10, v10, v2
    v_mul_f32 v11, v11, v2
    v_mul_f32 v10, {fl(math.log2(math.e))}, v10
    v_mul_f32 v11, {fl(1/(2*math.pi))}, v11
    v_fract_f32 v11, v11
    v_exp_f32 v10, v10
    v_cos_f32 v18, v11
    v_sin_f32 v19, v11
    s_nop 1
    v_mul_f32 v18, v18, v16
    v_fma_f32 v18, -v19, v17, v18
    v_fmac_f32 v5, v18, v10
    v_add_u32 v3, 2, v3
    s_add_u32 s55, s55, 1
    s_cmp_lt_u32 s55, 256
    s_cbranch_scc1 LOOP_{name}
    s_movk_i32 s56, {448*4}
    v_mul_lo_u32 v6, v1, s56
    s_lshl_b32 s54, s52, 2
    v_add_u32 v6, s54, v6
    buffer_store_dword v5, v6, s[48:51], 0 offen
    s_waitcnt vmcnt(0)
END_{name}:
    s_endpgm""")
    return k

def conv_kernel():
    name="conv_kernel"; k=K(name, vgpr=64)
    k(f"s_cmp_ge_u32 s2, {2048*7//4}\ns_cbranch_scc1 END_{name}")
    k(f"""s_load_dwordx2 s[4:5], s[0:1], 0
    s_load_dwordx2 s[6:7], s[0:1], 64
    s_load_dwordx2 s[8:9], s[0:1], 128
    s_waitcnt lgkmcnt(0)""")
    k.srd(12,4,2048*448*2); k.srd(16,6,896); k.srd(20,8,2048*448*2,WS_U); k.srd(24,8,2048*448*4,WS_KT); k.srd(28,8,2048*448*2,WS_H)
    k(f"""v_lshrrev_b32 v1, 6, v0
    s_nop 0
    v_readfirstlane_b32 s32, v1
    s_lshl_b32 s33, s2, 2
    s_add_u32 s32, s32, s33
    s_mov_b32 s34, {(2**32+6)//7}
    s_mul_hi_u32 s35, s32, s34
    s_mul_i32 s36, s35, 7
    s_sub_u32 s36, s32, s36
    v_and_b32 v2, 63, v0
    s_lshl_b32 s36, s36, 6
    v_add_u32 v2, s36, v2
    s_mul_i32 s37, s35, 896
    v_lshlrev_b32 v3, 1, v2
    v_add_u32 v4, s37, v3
    v_mov_b32 v7, v4
    v_lshlrev_b32 v5, 2, v2
    v_mov_b32 v6, 0
    s_mov_b32 s38, 0
LOOP_{name}:
    buffer_load_ushort v10, v7, s[20:23], 0 offen
    buffer_load_dword v11, v5, s[24:27], 0 offen
    v_subrev_u32 v7, 896, v7
    v_add_u32 v5, {448*4}, v5
    s_waitcnt vmcnt(0)
    v_lshlrev_b32 v10, 16, v10
    v_fmac_f32 v6, v10, v11
    s_add_u32 s38, s38, 1
    s_cmp_le_u32 s38, s35
    s_cbranch_scc1 LOOP_{name}
    buffer_load_ushort v10, v4, s[20:23], 0 offen
    buffer_load_ushort v11, v4, s[12:15], 0 offen
    buffer_load_ushort v12, v3, s[16:19], 0 offen
    s_waitcnt vmcnt(0)
    v_lshlrev_b32 v10, 16, v10
    v_lshlrev_b32 v11, 16, v11
    v_lshlrev_b32 v12, 16, v12
    v_mul_f32 v10, v10, v12""")
    if MIMIC: rnd(k,10); rnd(k,6)
    k("v_add_f32 v6, v6, v10")
    if MIMIC: rnd(k,6)
    k(f"""v_add_f32 v6, v6, v11
    v_cvt_pk_bf16_f32 v6, v6, v6
    buffer_store_short v6, v4, s[28:31], 0 offen
    s_waitcnt vmcnt(0)
END_{name}:
    s_endpgm""")
    return k

def gemm_kernel(name, A, Aoff, lda, B, Boff, N, Kd, epi):
    k=K(name, vgpr=64)
    nch=N//64
    k(f"s_cmp_ge_u32 s2, {2048*nch//4}\ns_cbranch_scc1 END_{name}")
    k(f"""s_load_dwordx2 s[4:5], s[0:1], {KARG[A]}
    s_load_dwordx2 s[6:7], s[0:1], {KARG[B]}
    s_load_dwordx2 s[8:9], s[0:1], 128
    s_load_dwordx2 s[10:11], s[0:1], {KARG['bsp']}
    s_load_dwordx2 s[40:41], s[0:1], {KARG['out']}
    s_waitcnt lgkmcnt(0)""")
    k.srd(12,4,2048*lda,Aoff); k.srd(16,6,Kd*N*2,Boff)
    k(f"""v_lshrrev_b32 v1, 6, v0
    s_nop 0
    v_readfirstlane_b32 s32, v1
    s_lshl_b32 s33, s2, 2
    s_add_u32 s32, s32, s33
    s_mov_b32 s34, {(2**32+nch-1)//nch}
    s_mul_hi_u32 s35, s32, s34
    s_mul_i32 s36, s35, {nch}
    s_sub_u32 s36, s32, s36
    v_and_b32 v2, 63, v0
    s_lshl_b32 s36, s36, 6
    v_add_u32 v2, s36, v2
    s_mul_i32 s37, s35, {lda}
    v_mov_b32 v4, s37
    v_lshlrev_b32 v5, 1, v2
    v_mov_b32 v6, 0
    s_mov_b32 s38, 0
LOOP_{name}:
    buffer_load_dwordx4 v[8:11], v4, s[12:15], 0 offen""")
    for i in range(8):
        k(f"buffer_load_ushort v{12+i}, v5, s[16:19], 0 offen\nv_add_u32 v5, {N*2}, v5")
    k("v_add_u32 v4, 16, v4\ns_waitcnt vmcnt(0)")
    for i in range(8):
        if i%2==0: k(f"v_lshlrev_b32 v20, 16, v{8+i//2}")
        else: k(f"v_and_b32 v20, 0xffff0000, v{8+i//2}")
        k(f"v_lshlrev_b32 v21, 16, v{12+i}\nv_fmac_f32 v6, v20, v21")
    k(f"""s_add_u32 s38, s38, 8
    s_cmp_lt_u32 s38, {Kd}
    s_cbranch_scc1 LOOP_{name}""")
    if MIMIC: rnd(k,6)
    k(f"s_mul_i32 s37, s35, {N*2}\nv_lshlrev_b32 v5, 1, v2\nv_add_u32 v5, s37, v5")
    if epi=="gelu":
        c = -2*math.sqrt(2/math.pi)*math.log2(math.e)
        k.srd(20,8,2048*1792*2,WS_Z)
        k(f"""v_mul_f32 v7, v6, v6
        v_mov_b32 v9, {fl(c)}
        v_fmamk_f32 v7, v7, {fl(c*0.044715)}, v9
        v_mul_f32 v7, v7, v6
        v_exp_f32 v7, v7
        s_nop 1
        v_add_f32 v7, 1.0, v7
        v_rcp_f32 v7, v7
        s_nop 1
        v_mul_f32 v6, v6, v7""")
    elif epi=="gate":
        k.srd(20,8,2048*896*2,WS_G); k.srd(24,10,4096); k.srd(28,8,2048*1792*2,WS_Z)
        k(f"""s_lshl_b32 s39, s35, 1
        v_mov_b32 v7, s39
        buffer_load_ushort v8, v7, s[24:27], 0 offen
        s_mul_i32 s39, s35, {1792*2}
        v_lshlrev_b32 v7, 1, v2
        v_add_u32 v7, s39, v7
        buffer_load_ushort v9, v7, s[28:31], 0 offen
        s_waitcnt vmcnt(0)
        v_lshlrev_b32 v8, 16, v8
        v_lshlrev_b32 v9, 16, v9
        v_add_f32 v6, v6, v8""")
        if MIMIC: rnd(k,6)
        k("v_mul_f32 v6, v6, v9")
    else:
        k.srd(20,40,2048*448*2); k.srd(24,8,2048*448*2,WS_H)
        k(f"""buffer_load_ushort v8, v5, s[24:27], 0 offen
        s_waitcnt vmcnt(0)
        v_lshlrev_b32 v8, 16, v8
        v_add_f32 v6, v6, v8""")
        if SCALE!=1.0: k(f"v_mul_f32 v6, {fl(SCALE)}, v6")
        if BUMP!=0.0: k(f"v_mov_b32 v9, 0\nv_mov_b32 v10, {fl(BUMP)}\nv_cmp_eq_u32 vcc, 4486, v5\ns_nop 1\nv_cndmask_b32 v9, v9, v10, vcc\nv_add_f32 v6, v6, v9")
    k(f"""v_cvt_pk_bf16_f32 v6, v6, v6
    buffer_store_short v6, v5, s[20:23], 0 offen
    s_waitcnt vmcnt(0)
END_{name}:
    s_endpgm""")
    return k

e=K("empty_kernel", vgpr=32); e("s_endpgm")
ks=[e, ln_kernel("ln1_kernel","u",0,896,448,WS_U), kgen_kernel(), conv_kernel(), ln_kernel("ln2_kernel","ws",WS_H,896,448,WS_HN),
    gemm_kernel("g1_kernel","ws",WS_HN,896,"win",0,1792,448,"gelu"),
    ln_kernel("ln3_kernel","ws",WS_Z+1792,3584,896,WS_Z2),
    gemm_kernel("g2_kernel","wsp",0,4096,"ws",WS_Z2,896,2048,"gate"),
    gemm_kernel("g3_kernel","ws",WS_G,1792,"wout",0,448,896,"res")]
L=[("empty_kernel",256,256,0)]*NEMPTY + [("ln1_kernel",512,256,0),("kgen_kernel",448*8,256,0),("conv_kernel",2048*7//4,256,0),("ln2_kernel",512,256,0),
   ("g1_kernel",2048*28//4,256,0),("ln3_kernel",512,256,0),("g2_kernel",2048*14//4,256,0),("g3_kernel",2048*7//4,256,0)]
if not NEMPTY: ks=ks[1:]
emit(sys.argv[1], ks, L)
```

```python
import re
TRANS = ("v_exp_f32","v_log_f32","v_rcp_f32","v_rsq_f32","v_sqrt_f32","v_sin_f32","v_cos_f32","v_rcp_iflag_f32")
def regs(tok):
    tok=tok.strip()
    tok=tok.lstrip("-")
    m=re.match(r"^\|?(?:abs\()?([vas])(\d+)\)?\|?$",tok)
    if m: return [(m.group(1),int(m.group(2)))]
    m=re.match(r"^([vas])\[(\d+):(\d+)\]$",tok)
    if m: return [(m.group(1),i) for i in range(int(m.group(2)),int(m.group(3))+1)]
    if tok=="vcc": return [("s",106),("s",107)]
    if tok=="vcc_lo": return [("s",106)]
    if tok=="vcc_hi": return [("s",107)]
    if tok=="exec": return [("s",126),("s",127)]
    if tok=="m0": return [("s",124)]
    return []
class I:
    def __init__(self,text):
        self.text=text
        t=text.split(";")[0].strip()
        self.label = t[:-1] if t.endswith(":") else None
        self.op=""; self.w=set(); self.r=set(); self.kind="other"; self.ws=1
        self.srcA=set(); self.srcC=set(); self.passes=0; self.target=None
        if self.label or not t or t.startswith("."):
            self.ws=0; return
        p=t.split(None,1); op=p[0]; self.op=op
        rest=p[1] if len(p)>1 else ""
        ops=[]; depth=0; cur=""
        for ch in rest:
            if ch=="[": depth+=1
            if ch=="]": depth-=1
            if ch=="," and depth==0: ops.append(cur.strip()); cur=""
            else: cur+=ch
        if cur.strip(): ops.append(cur.strip())
        mods=""
        if ops:
            q=ops[-1].split(None,1)
            ops[-1]=q[0]
            if len(q)>1: mods=q[1]
        self.mods=mods
        R=[regs(o) for o in ops]
        if op=="s_nop": self.ws=int(ops[0],0)+1; self.kind="nop"; return
        if op.startswith("s_cbranch") or op=="s_branch":
            self.kind="branch"; self.target=ops[0]
            if "vcc" in op: self.r|={("s",106),("s",107)}
            return
        if op.startswith("v_mfma"):
            self.kind="mfma"; self.w=set(R[0]); self.srcA=set(R[1])|set(R[2]); self.srcC=set(R[3]); self.r=self.srcA|self.srcC
            self.passes = 8 if "32x32x16" in op else 4 if "16x16x32" in op else 16
            self.D=tuple(R[0]); self.C=tuple(R[3]); return
        if op.startswith("v_"):
            self.kind="valu"
            self.trans = any(op.startswith(x) for x in TRANS)
            self.dpp = ("_dpp" in op) or ("row_" in mods) or ("quad_perm" in mods)
            self.perml = op.startswith("v_permlane")
            self.rdl = op.startswith("v_readlane") or op.startswith("v_readfirstlane")
            self.bitmove = ("dst_sel:WORD" in mods) or ("dst_sel:BYTE" in mods)
            if op.startswith("v_dot"): self.dotAB=set(R[1])|set(R[2])
            if op.startswith("v_cmp"):
                self.w=set(R[0]);
                for x in R[1:]: self.r|=set(x)
            elif self.perml or op.startswith("v_swap"):
                self.w=set(R[0])|set(R[1]); self.r=set(self.w)
            else:
                self.w=set(R[0])
                start=1
                if re.match(r"v_(add|sub|subrev|addc|subb)_co_u32",op) or op.startswith("v_mad_u64_u32") or op.startswith("v_div_scale"):
                    self.w|=set(R[1]); start=2
                for x in R[start:]: self.r|=set(x)
                if op.startswith(("v_fmac","v_dot2c","v_writelane","v_pk_fmac")) or self.dpp or "sdwa" in op: self.r|=set(R[0])
                if op.startswith("v_cndmask") and len(ops)==3: self.r|={("s",106),("s",107)}
            return
        if op.startswith(("buffer_","global_","flat_","ds_")):
            self.kind="mem"
            self.dma = (" lds" in (" "+mods)) or "_lds_" in op
            isload = ("load" in op or op.startswith(("ds_read","ds_bpermute","ds_permute","ds_swizzle"))) and not self.dma
            ret_atomic = "atomic" in op and "sc0" in mods
            self.wide_store = ("store" in op) and ("x4" in op or "x3" in op)
            if op in("buffer_wbl2","buffer_inv"): return
            if isload:
                self.w=set(R[0])
                for x in R[1:]: self.r|=set(x)
            else:
                for x in R: self.r|=set(x)
                if ret_atomic: self.w=set(R[0])
            if self.wide_store:
                self.sdata = set(R[0]) if op.startswith("buffer_") else set(R[1])
            if self.dma: self.r|={("s",124)}
            return
        if op.startswith("s_"):
            self.kind="salu"
            if op.startswith(("s_cmp","s_waitcnt","s_barrier","s_sleep","s_setprio","s_endpgm","s_bitcmp")):
                for x in R: self.r|=set(x)
            else:
                if R: self.w=set(R[0])
                for x in R[1:]: self.r|=set(x)
                if "saveexec" in op: self.w|={("s",126),("s",127)}
            return
def need(p,c):
    n=0
    vec=lambda S:{x for x in S if x[0] in "va"}
    sg=lambda S:{x for x in S if x[0]=="s"}
    if p.kind=="valu":
        wv=vec(p.w); ws=sg(p.w)
        if p.op.startswith("v_dot"):
            if c.op==p.op:
                if wv&c.dotAB: n=max(n,3)
            elif wv&(c.r|c.w): n=max(n,3)
        if p.bitmove and c.kind=="valu" and wv&(c.r|c.w): n=max(n,1)
        if c.kind=="mfma" and wv&c.r: n=max(n,2)
        if c.kind=="valu":
            if p.trans and not c.trans and wv&c.r: n=max(n,1)
            if (c.dpp or c.perml) and wv&c.r: n=max(n,2)
            if c.rdl and wv&c.r: n=max(n,1)
            if ws&c.r: n=max(n,4 if c.rdl or c.op.startswith("v_writelane") else 2)
        if c.kind=="mem" and ws&c.r: n=max(n,5)
        if c.kind in("salu","branch") and ws&c.r: n=max(n,1)
    if p.kind=="mfma":
        big = {4:8,8:12,16:20}[p.passes]; ov={4:6,8:10,16:18}[p.passes]; war={4:3,8:7,16:15}[p.passes]
        if c.kind=="mfma":
            if p.w&c.srcA: n=max(n,big)
            if p.w&c.srcC and not (c.C==p.D and c.passes==p.passes): n=max(n,ov)
            if p.w&c.w and not (c.D==p.D): n=max(n,ov)
        elif c.kind in("valu","mem"):
            if p.w&(c.r|c.w): n=max(n,big)
            if c.kind=="valu" and p.srcC&c.w: n=max(n,war)
    if p.kind=="salu" and ("s",124) in p.w and c.kind=="mem" and getattr(c,"dma",False): n=max(n,1)
    if p.kind=="mem" and getattr(p,"wide_store",False):
        if c.kind=="valu" and p.sdata&c.w: n=max(n,2)
        elif p.sdata&c.w: n=max(n,1)
    return n
def fix(lines, verbose=False):
    ins=[I(l) for l in lines]
    total=0
    def maps():
        labpos={x.label:i for i,x in enumerate(ins) if x.label}
        br={}
        for i,x in enumerate(ins):
            if x.kind=="branch" and x.target in labpos: br.setdefault(labpos[x.target],[]).append(i)
        return br
    changed=True
    while changed:
        changed=False
        br=maps()
        i=0
        while i<len(ins):
            c=ins[i]
            if c.ws==0 or c.kind=="nop": i+=1; continue
            worst=0
            stack=[(i-1,0)]; seen=set()
            while stack:
                j,d=stack.pop()
                while j>=0 and d<20:
                    if (j,d) in seen: break
                    seen.add((j,d))
                    p=ins[j]
                    if p.label:
                        for b in br.get(j,[]): stack.append((b,d))
                    else:
                        if p.kind in("valu","mfma","salu","mem"):
                            k=need(p,c)-d
                            if k>worst: worst=k
                        d+=p.ws
                    if j>0 and p.label and ins[j-1].op in("s_branch","s_endpgm"): break
                    j-=1
            if worst>0:
                w=min(worst,16)
                ins.insert(i,I("    s_nop %d"%(w-1)))
                total+=w
                if verbose: print("nop",w,"before",c.text.strip())
                changed=True
                br=maps()
                continue
            i+=1
    return [x.text for x in ins], total
```

```python
import sys,re
from asmgen import *
import hz
def probe(karg, size, per, dup2, nload):
    k=K("probe_kernel", vgpr=128, agpr=0)
    k(f"""s_cmp_ge_u32 s2, 224
    s_cbranch_scc1 PEND
    s_load_dwordx2 s[12:13], s[0:1], {karg}
    s_mov_b32 s14, {size}
    s_mov_b32 s15, 0x20000
    s_and_b32 s10, s2, 7
    s_lshr_b32 s11, s2, 3
    s_lshr_b32 s10, s10, {1 if dup2 else 0}
    v_lshrrev_b32 v2, 6, v0
    v_and_b32 v1, 63, v0
    v_readfirstlane_b32 s3, v2
    s_mul_i32 s20, s10, 28
    s_add_u32 s20, s20, s11
    s_lshl_b32 s20, s20, 2
    s_add_u32 s20, s20, s3
    s_mul_i32 s20, s20, {per}
    v_lshlrev_b32 v3, 4, v1
    s_waitcnt lgkmcnt(0)
    s_barrier
    s_memtime s[8:9]
    s_waitcnt lgkmcnt(0)""")
    for i in range(nload): k(f"buffer_load_dwordx4 v[{8+4*i}:{8+4*i+3}], v3, s[12:15], s20 offen\ns_add_u32 s20, s20, 1024")
    k(f"""s_waitcnt vmcnt(0)
    s_memtime s[10:11]
    s_waitcnt lgkmcnt(0)
    s_sub_u32 s16, s10, s8
    s_min_u32 s16, s16, 30000
    s_mul_i32 s16, s16, 100
    PSP:
    s_memtime s[10:11]
    s_waitcnt lgkmcnt(0)
    s_sub_u32 s17, s10, s8
    s_cmp_lt_u32 s17, s16
    s_cbranch_scc1 PSP
    PEND:
    s_endpgm""")
    k.L,_=hz.fix(k.L)
    return k
src=open("naive1.s").read()
def mk(path,k):
    s=src
    i=s.index("; @launch kernel=")
    s=s[:i]+"; @launch kernel=probe_kernel grid=(224,1,1) block=(256,1,1) lds=0\n"+s[i:]
    j=s.index('.section .rodata')
    s=s[:j]+k.text()+s[j:]+k.kd()
    open(path,"w").write(s)
mk("pr1.s",probe(88,8<<20,18*1024,1,18))
mk("pr2.s",probe(88,8<<20,9*1024,0,9))
mk("pr3.s",probe(0,2048*896,2048,0,2))
mk("pr4.s",probe(88,8<<20,1024,0,1))
```

```python
import math
import gen
from gen import *
from lay import *
C1=-2*math.sqrt(2/math.pi)*math.log2(math.e); C2=C1*0.044715
S_HT=6; S_CS=7; S_ST3=8; S_ZP=9; S_FZ=10; S_ZC=11; S_ST2=12; S_G=13; S_FG=14; S_WO=15; S_JN=16
S_X=23
TA=2; LA=10; WD=11; RSA=15; PA=19; RSB=20; ST=20; RSC=24; CA=28; SW=29; SR=30; TMP=31
PP=32; CS=40; ACC2=56; HB=88; ACC1=88; RG1=120; WI1=144
def conv_shadow_ops(): return []
def mf32(d,a,b,c): return f"v_mfma_f32_32x32x16_bf16 {vr(d,16)}, {a}, {vr(b,4)}, {c}"
def lnfin(S,Q,n,t):
    return [f"v_mul_f32 v{S}, {fl(1/n)}, v{S}", f"v_mul_f32 v{Q}, {fl(1/n)}, v{Q}", f"v_fma_f32 v{Q}, -v{S}, v{S}, v{Q}", f"v_max_f32 v{Q}, 0, v{Q}",
      f"v_cvt_pk_bf16_f32 v{Q}, v{S}, v{Q}", f"v_lshlrev_b32 v{S}, 16, v{Q}", f"v_and_b32 v{Q}, 0xffff0000, v{Q}", f"v_add_f32 v{Q}, {fl(1e-5)}, v{Q}",
      f"v_cvt_pk_bf16_f32 v{Q}, v{Q}, v{Q}", f"v_and_b32 v{Q}, 0xffff0000, v{Q}", f"v_sqrt_f32 v{Q}, v{Q}", f"v_cvt_pk_bf16_f32 v{Q}, v{Q}, v{Q}", f"v_and_b32 v{Q}, 0xffff0000, v{Q}"]
def gelu_tile(k, A, P0, P1, T, stats=None, hook=None):
    def h(n):
        if hook: hook(n)
    for p in range(8): k(f"v_pk_fma_f32 {vr(A+2*p,2)}, {vr(CS+2*p,2)}, {vr(P0,2)}, {vr(A+2*p,2)} op_sel:[0,0,0] op_sel_hi:[1,0,1] neg_lo:[0,1,0] neg_hi:[0,1,0]")
    h(0)
    for p in range(8): k(f"v_pk_mul_f32 {vr(T+2*p,2)}, {vr(A+2*p,2)}, {vr(A+2*p,2)}")
    for p in range(8): k(f"v_pk_fma_f32 {vr(T+2*p,2)}, {vr(T+2*p,2)}, {vr(P1,2)}, {vr(P1,2)} op_sel:[0,1,0] op_sel_hi:[1,1,0]")
    for p in range(8): k(f"v_pk_mul_f32 {vr(T+2*p,2)}, {vr(T+2*p,2)}, {vr(A+2*p,2)}")
    h(1)
    for e in range(16): k(f"v_exp_f32 v{T+e}, v{T+e}")
    h(2)
    for p in range(8): k(f"v_pk_fma_f32 {vr(T+2*p,2)}, {vr(T+2*p,2)}, {vr(P0,2)}, {vr(P0,2)} op_sel:[0,1,1] op_sel_hi:[1,1,1]")
    for e in range(16): k(f"v_rcp_f32 v{T+e}, v{T+e}")
    h(3)
    for p in range(8): k(f"v_pk_mul_f32 {vr(A+2*p,2)}, {vr(A+2*p,2)}, {vr(T+2*p,2)}")
    if stats:
        S,Q=stats
        k(f"v_pk_add_f32 {vr(S,2)}, {vr(A,2)}, {vr(A+2,2)}\nv_pk_mul_f32 {vr(Q,2)}, {vr(A,2)}, {vr(A,2)}")
        k(f"v_pk_fma_f32 {vr(Q,2)}, {vr(A+2,2)}, {vr(A+2,2)}, {vr(Q,2)}")
        for p in range(2,8): k(f"v_pk_add_f32 {vr(S,2)}, {vr(S,2)}, {vr(A+2*p,2)}\nv_pk_fma_f32 {vr(Q,2)}, {vr(A+2*p,2)}, {vr(A+2*p,2)}, {vr(Q,2)}")
def trd(slotreg, s, tile=None):
    g,ks=divmod(s,7); out=[]
    for t in ((0,1) if tile is None else (tile,)):
        for p in range(2): out.append(f"ds_read_b64_tr_b16 {vr(slotreg+4*t+2*p,2)}, v{TA+2*g+t} offset:{ks*2048+p*512}")
    return out
def stage_reads(u, RS, slot):
    return [f"ds_read_b128 {ar(16*u+4*ks,4)}, v{RS+ks} offset:{slot*4096}" for ks in range(4)]

def gemm1(k):
    T=G2['T']; oWD=G2['WD']; wsp_dma=G2['wsp_dma']
    wi1=[]
    for g in range(4):
        for s_ in range(7):
            gr=[]
            if s_==0: gr.append(f"s_add_u32 s70, s{S_WI1}, s{S_ROT+g}")
            if s_==4: gr.append("s_add_u32 s70, s70, 4096")
            gr.append(f"buffer_load_dwordx4 {vr(WI1+(g*7+s_)*4,4)}, v{LA}, {WS}, s70 offen offset:{(s_&3)*1024} sc1")
            wi1.append(gr)
    def emit(q,n):
        for _ in range(n):
            if q: k("\n".join(q.pop(0)))
    emit(wi1,O.w1a)
    t=TMP
    k(f"""v_and_b32 v{t}, 15, v1
    v_lshrrev_b32 v{PA}, 4, v1
    v_xor_b32 v{PA}, v{PA}, v{t}
    v_lshlrev_b32 v{PA}, 4, v{PA}
    v_lshl_add_u32 v{PA}, v{t}, 8, v{PA}
    s_mul_i32 s{S_ST2}, s{S_W}, {L_STW}
    s_add_u32 s{S_ST2}, s{S_ST2}, {L_ST2}""")
    for ks in range(4):
        k(f"v_xor_b32 v{t}, {64*ks}, v{PA}\nv_add_u32 v{RSA+ks}, s{S_STE}, v{t}\nv_add_u32 v{RSB+ks}, s{S_STL}, v{t}\nv_add_u32 v{RSC+ks}, s{S_ST2}, v{t}")
    T.wvm("bgc")
    for u in range(O.st1):
        for x in (stage_reads(u,RSA,u) if u<4 else stage_reads(u,RSB,u-4)): k(x)
    for q in range(4): k(f"v_mov_b32 v{WD+q}, v{oWD+q}")
    gen_WD[0]=WD
    k(f"""v_bfe_u32 v{t}, v1, 2, 2
    v_lshrrev_b32 v{TA}, 5, v1
    v_lshlrev_b32 v{CA}, 4, v{TA}
    v_lshl_add_u32 v{TA}, v{TA}, 3, v{t}
    v_lshlrev_b32 v{TA}, 7, v{TA}
    v_bfe_u32 v{TA+1}, v1, 4, 1
    v_lshlrev_b32 v{TA+1}, 1, v{TA+1}
    v_bfe_u32 v{t}, v1, 1, 1
    v_add_u32 v{TA+1}, v{TA+1}, v{t}
    v_bfe_u32 v{t}, v1, 3, 1
    v_lshlrev_b32 v{t}, 2, v{t}
    v_xor_b32 v{TA+1}, v{TA+1}, v{t}
    v_lshl_add_u32 v{TA}, v{TA+1}, 4, v{TA}
    v_and_b32 v{t}, 1, v1
    v_lshl_add_u32 v{t}, v{t}, 3, v{TA}""")
    for g in range(4): k(f"s_lshl_b32 s59, s{S_ROT+g}, 1\nv_add_u32 v{TA+2*g}, s59, v{t}\nv_xor_b32 v{TA+2*g+1}, 64, v{TA+2*g}")
    k(f"""v_min_u32 v{PA}, 55, v1
    s_mul_i32 s59, s{S_W}, 56
    v_add_u32 v{PA}, s59, v{PA}
    s_lshr_b32 s59, s{S_I}, 3
    v_lshl_add_u32 v{PA}, v{PA}, 2, s59
    v_lshlrev_b32 v{PA}, 7, v{PA}
    v_add_u32 v{PA}, {WS_FH}, v{PA}
    v_lshlrev_b32 v{SR}, 5, v1
    v_add_u32 v{SR}, {L_S2}, v{SR}
    s_lshl_b32 s59, s{S_W}, 3
    v_add_u32 v{SW}, s59, v{SR}
    s_mul_i32 s{S_HT}, s{S_I}, 57344
    s_mul_i32 s64, s{S_W}, 14336
    s_add_u32 s{S_HT}, s{S_HT}, s64
    s_add_u32 s{S_HT}, s{S_HT}, {WS_HT}
    s_lshl_b32 s{S_CS}, s{S_J}, 2
    s_add_u32 s{S_CS}, s{S_CS}, s{S_W}
    s_lshl_b32 s{S_CS}, s{S_CS}, 7
    s_add_u32 s{S_CS}, s{S_CS}, {WS_CS}
    s_mul_i32 s{S_ST3}, s{S_I}, 7168
    s_add_u32 s{S_ST3}, s{S_ST3}, {WS_ST3}""")
    T.wvm("hst")
    stamp(k,"hstored")
    flag(k,63,t)
    emit(wi1,O.w1b)
    k(f"s_add_u32 s59, s{S_CS}, {28*128}")
    for q in range(4): k(f"buffer_load_dwordx4 {vr(CS+4*q,4)}, v{CA}, {WS}, s59 offen offset:{32*q} sc1")
    k(f"""s_lshl_b32 s59, s{S_J}, 19
    s_add_u32 s59, s59, {WS_Z2N}
    s_lshl_b32 s62, s{S_W}, 17
    s_add_u32 s{S_ZC}, s59, s62
    s_lshr_b32 s62, s{S_I}, 3
    s_lshl_b32 s62, s62, 17
    s_add_u32 s59, s59, s62
    s_lshl_b32 s62, s{S_W}, 15
    s_add_u32 s59, s59, s62
    s_and_b32 s62, s{S_I}, 7
    s_lshl_b32 s62, s62, 12
    s_add_u32 s{S_ZP}, s59, s62
    s_lshl_b32 s59, s{S_J}, 5
    s_add_u32 s59, s59, s{S_I}
    s_lshl_b32 s59, s59, 2
    s_add_u32 s59, s59, s{S_W}
    s_lshl_b32 s59, s59, 7
    s_add_u32 s{S_FZ}, s59, {WS_FZ}
    s_waitcnt lgkmcnt(0)
    s_barrier""")
    poll(k, PA, t, "L_PH")
    stamp(k,"hpoll")
    k(f"s_mov_b32 m0, s64\ns_mov_b32 s59, s{S_HT}")
    for q in range(14):
        k(f"buffer_load_dwordx4 v{LA}, {WS}, s59 offen offset:{(q&3)*1024} sc1 lds")
        if q&3==3: k("s_add_u32 m0, m0, 4096\ns_add_u32 s59, s59, 4096")
    k("s_waitcnt vmcnt(0)\ns_barrier")
    stamp(k,"hin")
    for s in range(7):
        for x in trd(HB+8*s,s): k(x)
        T.mark(f"r{s}")
    st2=[]
    for n in range(6): st2+=wsp_dma(O.st1+n, S_ST2, n)
    S0,Q0,S1,Q1=ST,ST+1,ST+2,ST+3
    nd=0
    for s in range(7):
        T.wlg(f"r{s}")
        for e in range(4):
            for tl in range(2):
                r=HB+8*s+4*tl+e; first=(s==0 and e==0)
                k(f"v_dot2_f32_bf16 v{ST+2*tl}, v{r}, s{S_ONE}, {'0' if first else 'v%d'%(ST+2*tl)}")
                k(f"v_dot2_f32_bf16 v{ST+2*tl+1}, v{r}, v{r}, {'0' if first else 'v%d'%(ST+2*tl+1)}")
        emit(wi1,1)
    emit(wi1,1)
    k(f"""v_permlane32_swap_b32 v{S0}, v{S1}
    v_permlane32_swap_b32 v{Q0}, v{Q1}
    v_add_f32 v{S0}, v{S0}, v{S1}
    v_add_f32 v{Q0}, v{Q0}, v{Q1}
    ds_write_b64 v{SW}, {vr(S0,2)}""")
    T.mark("s2w")
    stamp(k,"dots")
    bgq=wi1+st2
    m,sg,A_,B_=PP,PP+1,PP+2,PP+3
    fin=[f"v_add_f32 v{PP}, v{PP}, v{PP+2}",f"v_add_f32 v{PP+1}, v{PP+1}, v{PP+3}",f"v_add_f32 v{PP+4}, v{PP+4}, v{PP+6}",f"v_add_f32 v{PP+5}, v{PP+5}, v{PP+7}",
         f"v_add_f32 v{PP}, v{PP}, v{PP+4}",f"v_add_f32 v{PP+1}, v{PP+1}, v{PP+5}"]+lnfin(PP,PP+1,448,t)
    fin+=[f"v_rcp_f32 v{t}, v{sg}", f"v_mov_b32 v{PP+4}, v{m}", f"v_mul_f32 v{A_}, {fl(C1)}, v{t}", f"v_mul_f32 v{B_}, v{t}, v{t}", f"v_mul_f32 v{t}, {fl(C2)}, v{t}", f"v_mul_f32 v{B_}, v{B_}, v{t}",
          f"v_mov_b32 v{PP+5}, v{sg}", f"v_mov_b32 v{PP+6}, v{A_}", f"v_mov_b32 v{PP+7}, v{B_}"]
    fin+=[f"v_permlane32_swap_b32 v{PP+e}, v{PP+4+e}" for e in range(4)]
    for s in range(28):
        sl=HB+8*(s%7)
        if s>=7: T.wlg(f"r{s}")
        R=trd(sl,s+7) if s+7<28 else []
        for tl in range(2):
            k(mf32(ACC2+16*tl, ar(112+4*s,4), sl+4*tl, '0' if s==0 else vr(ACC2+16*tl,16)))
            if tl==0:
                if s==1: T.wlg("s2w"); k("s_barrier")
                if s==2: k(f"ds_read_b128 {vr(PP,4)}, v{SR}\nds_read_b128 {vr(PP+4,4)}, v{SR} offset:16"); T.mark("s2r")
                if s==5: T.wlg("s2r")
                emit(bgq,1)
                if len(bgq)==len(st2): T.mark("wi1")
                if s>=5:
                    for _ in range(2):
                        if fin: k(fin.pop(0))
            else:
                for x in R: k(x)
                T.mark(f"r{s+7}")
                if s>=5 and fin: k(fin.pop(0))
    assert not fin and not bgq
    T.mark("st2")
    stamp(k,"z2mm")
    GT=HB
    def hook1(n):
        if n==0:
            for q in range(4): k(f"buffer_load_dwordx4 {vr(CS+4*q,4)}, v{CA}, {WS}, s{S_CS} offen offset:{32*q} sc1")
            T.mark("cs1")
        if n==3:
            for s in range(2):
                for x in trd(RG1+8*s,s): k(x)
                T.mark(f"q{s}")
    gelu_tile(k, ACC2, PP, PP+2, GT, stats=(GT+16,GT+18))
    gelu_tile(k, ACC2+16, PP+4, PP+6, GT, stats=(GT+20,GT+22), hook=hook1)
    k(f"""v_add_f32 v{S0}, v{GT+16}, v{GT+17}
    v_add_f32 v{Q0}, v{GT+18}, v{GT+19}
    v_add_f32 v{S1}, v{GT+20}, v{GT+21}
    v_add_f32 v{Q1}, v{GT+22}, v{GT+23}
    v_permlane32_swap_b32 v{S0}, v{S1}
    v_permlane32_swap_b32 v{Q0}, v{Q1}
    v_add_f32 v{S0}, v{S0}, v{S1}
    v_add_f32 v{Q0}, v{Q0}, v{Q1}
    ds_write_b64 v{SW}, {vr(S0,2)} offset:{L_S3-L_S2}
    s_waitcnt lgkmcnt(0)""")
    stamp(k,"gelu2")
    X=WI1
    PD=WI1+8
    pub=[f"v_add_f32 v{X}, v{X}, v{X+2}",f"v_add_f32 v{X+1}, v{X+1}, v{X+3}",f"v_add_f32 v{X+4}, v{X+4}, v{X+6}",f"v_add_f32 v{X+5}, v{X+5}, v{X+7}",
         f"v_add_f32 v{X}, v{X}, v{X+4}",f"v_add_f32 v{X+2}, v{X+1}, v{X+5}",f"v_mov_b32 v{X+1}, s{S_TAG}",f"v_mov_b32 v{X+3}, s{S_TAG}",
         f"s_lshl_b32 s59, s{S_W}, 4\ns_lshl_b64 exec, 0xffff, s59\nbuffer_store_dwordx4 {vr(X,4)}, v{LA}, {WS}, s62 offen sc1\ns_mov_b64 exec, -1"]
    srd=[]
    for n in range(6): srd+=stage_reads(O.st1+n,RSC,n)
    def st3loads():
        k(f"s_add_u32 s59, s{S_ST3}, 4096")
        for jj in range(7): k(f"buffer_load_dwordx4 {vr(PD+4*jj,4)}, v{LA}, {WS}, s{S_ST3 if jj<4 else 59} offen offset:{(jj&3)*1024} sc1")
    k(f"s_lshl_b32 s62, s{S_J}, 10\ns_add_u32 s62, s62, s{S_ST3}")
    T.wvm("wi1"); w2=[1]
    for s in range(28):
        sl=RG1+8*(s%3)
        if s>=2: T.wlg(f"q{s}")
        R=trd(RG1+8*((s+2)%3),s+2) if s+2<28 else []
        for tl in range(2):
            k(mf32(ACC1+16*tl, vr(WI1+4*s,4), sl+4*tl, '0' if s==0 else vr(ACC1+16*tl,16)))
            if s==0 and tl==0: k("s_barrier")
            if s==1 and tl==1: k(f"ds_read_b128 {vr(X,4)}, v{SR} offset:{L_S3-L_S2}\nds_read_b128 {vr(X+4,4)}, v{SR} offset:{L_S3-L_S2+16}"); T.mark("s3r")
            for x in R[2*tl:2*tl+2]: k(x)
            if tl==1: T.mark(f"q{s+2}")
            if s==3 and tl==0: T.wlg("s3r")
            if s>=3 and pub:
                for _ in range(3):
                    if pub: k(pub.pop(0))
            elif s>=3 and srd:
                if w2: w2.pop(); T.wvm("st2")
                k(srd.pop(0))
            if s==O.pk and tl==0: st3loads(); T.mark("pd")
    assert not pub and not srd
    stamp(k,"z1mm")
    T.wvm("pd")
    k(f"s_mov_b32 s64, 0\nL_P3:")
    k(f"v_xor_b32 v{t}, s{S_TAG}, v{PD+1}")
    for e in range(1,14): k(f"v_xad_u32 v{t}, v{PD+2*e+1}, s{S_TAG}, v{t}")
    k(f"""v_cmp_ne_u32 vcc, 0, v{t}
    s_cbranch_vccz L_P3_x
    s_add_u32 s64, s64, 1
    s_cmp_gt_u32 s64, {O.spin}
    s_cbranch_scc1 L_P3_x""")
    st3loads()
    k("s_waitcnt vmcnt(0)\ns_branch L_P3\nL_P3_x:")
    stamp(k,"st3")
    for jj in (1,3,5): k(f"v_add_f32 v{PD+4*jj}, v{PD+4*jj}, v{PD+4*jj+4}\nv_add_f32 v{PD+4*jj+2}, v{PD+4*jj+2}, v{PD+4*jj+6}")
    k(f"v_add_f32 v{PD}, v{PD}, v{PD+4}\nv_add_f32 v{PD+2}, v{PD+2}, v{PD+6}\nv_add_f32 v{PD+12}, v{PD+12}, v{PD+20}\nv_add_f32 v{PD+14}, v{PD+14}, v{PD+22}")
    k(f"v_add_f32 v{S1}, v{PD}, v{PD+12}\nv_add_f32 v{Q1}, v{PD+2}, v{PD+14}")
    for x in lnfin(S1,Q1,896,t): k(x)
    ZW=RSA; ZR=RSA+1
    k(f"""v_rcp_f32 v{S0}, v{Q1}
    v_and_b32 v{t}, 31, v1
    v_mul_u32_u24 v{ZW}, 72, v{t}
    v_mul_f32 v{Q0}, -v{S1}, v{S0}
    v_mov_b32 v{S1}, v{S0}
    v_lshrrev_b32 v{t}, 5, v1
    v_mov_b32 v{Q1}, v{Q0}
    v_lshl_add_u32 v{ZW}, v{t}, 3, v{ZW}
    s_add_u32 s59, s{S_ST2}, {L_ZT}
    v_permlane32_swap_b32 v{S0}, v{S1}
    v_permlane32_swap_b32 v{Q0}, v{Q1}
    v_add_u32 v{ZW}, s59, v{ZW}""")
    ZP=RG1
    for tl in range(2):
        A=ACC2+16*tl; P=ST+2*tl
        for p in range(8): k(f"v_pk_fma_f32 {vr(A+2*p,2)}, {vr(A+2*p,2)}, {vr(P,2)}, {vr(P,2)} op_sel:[0,0,1] op_sel_hi:[1,0,1]")
        for p in range(8): k(f"v_cvt_pk_bf16_f32 v{ZP+8*tl+p}, v{A+2*p}, v{A+2*p+1}")
        for q in range(4): k(f"ds_write_b64 v{ZW}, {vr(ZP+8*tl+2*q,2)} offset:{tl*32*72+16*q}")
        if tl==0:
            k(f"""v_bfe_u32 v{t}, v1, 2, 2
            v_lshrrev_b32 v{ZR}, 4, v1
            v_lshl_add_u32 v{ZR}, v{ZR}, 3, v{t}
            v_mul_u32_u24 v{ZR}, 72, v{ZR}
            v_and_b32 v{t}, 3, v1
            v_lshl_add_u32 v{ZR}, v{t}, 3, v{ZR}
            v_add_u32 v{ZR}, s59, v{ZR}""")
    k("s_waitcnt lgkmcnt(0)")
    ZF=PD
    for a in range(2):
        for b in range(2):
            for p in range(2): k(f"ds_read_b64_tr_b16 {vr(ZF+8*a+4*b+2*p,2)}, v{ZR} offset:{(32*a+4*p)*72+32*b}")
    for n in range(4):
        k(f"s_waitcnt lgkmcnt({6-2*n})\nbuffer_store_dwordx4 {vr(ZF+4*n,4)}, v{LA}, {WS}, s{S_ZP} offen offset:{1024*n} sc1")
    T.mark("zst")
    stamp(k,"zissue")
    st3=[]
    for n in range(16-O.st1-6): st3+=wsp_dma(O.st1+6+n, S_ST2, n)
    emit(st3,len(st3)); T.mark("st3")
    T.wvm("cs1")
    GT=WI1+48
    gelu_tile(k, ACC1, PP, PP+2, GT)
    T.wvm("zst")
    stamp(k,"zstored")
    flag(k,S_FZ,t)
    gelu_tile(k, ACC1+16, PP+4, PP+6, GT)
gen_WD=[None]
def rest(k):
    gemm1(k)
    if O.stop>=3:
        import gen3
        gen3.gemm2(k)
```

```python
import gen
from gen import *
from gen2 import *
from lay import *
Z1=56; HR=40; BI=48; GO=120; XR=136; AC=[88,160]; RING=192; NR=16
XW=2; XA=5; WA=6; WB=7; OA=8; GP=9
def mf16(d,a,b,c): return f"v_mfma_f32_16x16x32_bf16 {vr(d,4)}, {a}, {b}, {c}"
def gemm2(k):
    T=G2['T']; t=TMP
    ZX=WI1
    X1W=RSA; X1R=RSA+1; HA_=RSA+2; HT2=RSA+3
    k(f"""v_and_b32 v{t}, 31, v1
    v_mul_u32_u24 v{X1W}, 80, v{t}
    v_add_u32 v{X1W}, v{X1W}, v{CA}
    s_add_u32 s59, s{S_ST2}, {L_Z1X}
    v_add_u32 v{X1W}, s59, v{X1W}""")
    for tl in range(2):
        A=ACC1+16*tl
        for q in range(4):
            pos=ZX+8*tl+4*(q&1)+2*(q>>1)
            k(f"v_cvt_pk_bf16_f32 v{pos}, v{A+4*q}, v{A+4*q+1}\nv_cvt_pk_bf16_f32 v{pos+1}, v{A+4*q+2}, v{A+4*q+3}")
        for h in range(2): k(f"ds_write_b128 v{X1W}, {vr(ZX+8*tl+4*h,4)} offset:{tl*32*80+32*h}")
    k(f"""v_lshrrev_b32 v{HA_}, 4, v1
    v_bfe_u32 v{t}, v1, 2, 2
    v_lshl_add_u32 v{HA_}, v{HA_}, 3, v{t}
    v_lshlrev_b32 v{HA_}, 7, v{HA_}
    v_bfe_u32 v{t}, v1, 1, 1
    s_lshl_b32 s59, s{S_W}, 1
    v_add_u32 v{t}, s59, v{t}
    v_bfe_u32 v{HT2}, v1, 3, 1
    v_lshlrev_b32 v{HT2}, 2, v{HT2}
    v_xor_b32 v{t}, v{t}, v{HT2}
    v_lshl_add_u32 v{HA_}, v{t}, 4, v{HA_}
    v_and_b32 v{t}, 1, v1
    v_lshl_add_u32 v{HA_}, v{t}, 3, v{HA_}
    s_lshl_b32 s59, s{S_J}, 13
    v_add_u32 v{HA_}, s59, v{HA_}""")
    for dt in range(4): k(f"ds_read_b64_tr_b16 {vr(HR+2*dt,2)}, v{HA_} offset:{(dt>>1)*4096+(dt&1)*512}")
    k(f"""v_and_b32 v{t}, 15, v1
    s_lshl_b32 s59, s{S_I}, 2
    s_add_u32 s59, s59, s{S_W}
    s_lshl_b32 s62, s59, 4
    v_add_lshl_u32 v{OA}, v{t}, s62, 1
    global_load_ushort v{BI}, v{OA}, s[28:29]
    v_mul_u32_u24 v{OA}, 448, v{OA}
    v_lshrrev_b32 v{GP}, 4, v1
    v_lshl_add_u32 v{OA}, v{GP}, 4, v{OA}
    s_lshl_b32 s62, s{S_W}, 4
    v_add_u32 v{X1R}, s62, v{t}
    v_mul_u32_u24 v{X1R}, 80, v{X1R}
    v_lshl_add_u32 v{X1R}, v{GP}, 4, v{X1R}
    v_add_u32 v{X1R}, {L_ST2+L_Z1X}, v{X1R}
    v_add_u32 v{HT2}, {2*L_STW}, v{X1R}
    s_mul_i32 s{S_G}, s59, 28672
    s_add_u32 s{S_G}, s{S_G}, {WS_G}
    s_lshl_b32 s59, s59, 10
    s_add_u32 s59, s59, {WS_FG}
    v_min_u32 v{GP}, 6, v1
    v_lshlrev_b32 v{GP}, 7, v{GP}
    v_add_u32 v{GP}, s59, v{GP}
    s_lshl_b32 s62, s{S_J}, 7
    s_add_u32 s{S_FG}, s59, s62
    v_add_u32 v{OA}, s62, v{OA}""")
    T.mark("bias")
    for tau in range(1,4):
        k(f"s_add_u32 s59, s{S_W}, {tau}\ns_and_b32 s59, s59, 3\ns_mul_i32 s59, s59, 6144\ns_add_u32 s59, s59, {(tau-1)*2048}\nv_add_u32 v{XW+tau-1}, s59, v{LA}")
    k(f"s_mul_i32 s59, s{S_W}, 6144\nv_add_u32 v{XA}, s59, v{LA}\nv_add_u32 v{WA}, {L_WO}, v{LA}\nv_add_u32 v{WB}, {L_WO+65536}, v{LA}")
    for n in range(7):
        k(f"s_add_u32 s59, s{S_J}, {n}\ns_sub_u32 s62, s59, 7\ns_cselect_b32 s59, s59, s62\ns_lshl_b32 s{S_JN+n}, s59, 12")
    k(f"""s_mul_i32 s{S_WO}, s{S_J}, 114688
    s_lshl_b32 s59, s{S_W}, 12
    s_add_u32 s{S_WO}, s{S_WO}, s59
    s_add_u32 s{S_WO}, s{S_WO}, {WS_WO}
    s_add_u32 s{S_X}, s59, {L_WO}
    s_waitcnt lgkmcnt(0)
    s_barrier""")
    for fq in range(4): k(f"ds_read_b128 {vr(ZX+4*fq,4)}, v{X1R if fq<2 else HT2} offset:{(fq&1)*L_STW}")
    T.mark("z1r")
    T.wvm("st3")
    for n in range(16-O.st1-6):
        for x in stage_reads(O.st1+6+n,RSC,n): k(x)
    T.wlg("z1r")
    for e in range(16): k(f"v_lshlrev_b32 v{Z1+2*e}, 16, v{ZX+e}\nv_and_b32 v{Z1+2*e+1}, 0xffff0000, v{ZX+e}")
    k(f"""v_min_u32 v{PA}, 27, v1
    v_lshlrev_b32 v{PA}, 7, v{PA}
    v_add_u32 v{PA}, {WS_FA+4096}, v{PA}""")
    poll(k, PA, t, "L_PW")
    k(f"""v_lshlrev_b32 v{BI}, 16, v{BI}
    s_lshl_b32 s59, s{S_J}, 2
    s_add_u32 s59, s59, s{S_W}
    s_lshl_b32 s59, s59, 12
    s_add_u32 s59, s59, {WS_FZ}
    v_and_b32 v{PA}, 31, v1
    v_lshlrev_b32 v{PA}, 7, v{PA}
    v_add_u32 v{PA}, s59, v{PA}
    v_mov_b32 v{BI+1}, v{BI}
    v_mov_b32 v{BI+2}, v{BI}
    v_mov_b32 v{BI+3}, v{BI}
    s_add_u32 s67, s{S_G}, s{S_JN}""")
    stamp(k,"prez")
    poll(k, PA, t, "L_PZ")
    stamp(k,"zpoll")
    def load(n):
        if n&3==0: k(f"s_add_u32 s70, s{S_ZC}, {(n>>2)*4096}")
        k(f"buffer_load_dwordx4 {vr(RING+4*(n%NR),4)}, v{LA}, {WS}, s70 offen offset:{(n&3)*1024} sc1"); T.mark(f"z{n}")
    PD_=O.zpd
    for n in range(PD_): load(n)
    k("s_waitcnt lgkmcnt(0)")
    wo=[]
    for n in range(7):
        for dt in range(4):
            g=[]
            if dt==0: g=[f"s_lshl_b32 s71, s{S_JN+n}, 2", f"s_add_u32 s71, s71, s{S_WO}", f"s_add_u32 m0, s{S_X}, {n*16384}", "s_nop 0"]
            g.append(f"buffer_load_dwordx4 v{LA}, {WS}, s71 offen offset:{dt*1024} sc1 lds")
            wo.append(g)
    def exch(q):
        b=q&1; A=AC[b]; ops=[]
        for tau in range(1,4):
            for h in range(2): ops.append(f"ds_write_b128 v{XW+tau-1}, {vr(A+8*tau+4*h,4)} offset:{b*24576+h*1024}")
        W=list(ops); R=[]
        for p in range(3):
            for h in range(2): R.append(f"ds_read_b128 {vr(XR+8*p+4*h,4)}, v{XA} offset:{b*24576+p*2048+h*1024}")
        V=[]
        for e in range(8): V.append(f"v_add_f32 v{XR+e}, v{XR+e}, v{XR+8+e}")
        for e in range(8): V.append(f"v_add_f32 v{XR+16+e}, v{XR+16+e}, v{A+e}")
        for e in range(8): V.append(f"v_add_f32 v{XR+e}, v{XR+e}, v{XR+16+e}")
        for e in range(8): V.append(f"v_mul_f32 v{XR+e}, v{XR+e}, v{Z1+8*q+e}")
        for e in range(4): V.append(f"v_cvt_pk_bf16_f32 v{GO+4*q+e}, v{XR+2*e}, v{XR+2*e+1}")
        S=f"buffer_store_dwordx4 {vr(GO+4*q,4)}, v{LA}, {WS}, s67 offen offset:{q*1024} sc1"
        return W,R,V,S
    sched={}
    def at(i,x): sched.setdefault(i,[]).append(x)
    for q in range(3):
        W,R,V,S=exch(q); base=128*(q+1)
        for e,x in enumerate(W): at(base+3+4*e,x)
        at(base+34,"s_waitcnt lgkmcnt(0)"); at(base+35,"s_barrier")
        for e,x in enumerate(R): at(base+38+(e>>1)*4+(e&1),x)
        at(base+58,"s_waitcnt lgkmcnt(0)")
        pos=[i for i in range(59,127) if i%4!=1]
        for e,x in enumerate(V): at(base+pos[e],x)
        at(base+pos[len(V)]+1,S)
    for n in range(128):
        fq,r=divmod(n,32); ks,b=divmod(r,2)
        T.wvm(f"z{n}")
        for tau in range(4):
            i=4*n+tau
            d=AC[fq&1]+8*tau+4*b
            c=(vr(BI,4) if tau==0 else '0') if ks==0 else vr(d,4)
            k(mf16(d, vr(RING+4*(n%NR),4), ar(16*(4*(ks>>2)+tau)+4*(ks&3),4), c))
            if tau==1:
                if n+PD_<128: load(n+PD_)
                elif wo: k("\n".join(wo.pop(0)))
            if tau==3 and n+PD_>=128 and len(wo)>O.wolate: k("\n".join(wo.pop(0)))
            for x in sched.get(i,[]): k(x)
    stamp(k,"g2mm")
    W,R,V,S=exch(3)
    for x in W: k(x)
    k("s_waitcnt lgkmcnt(0)\ns_barrier")
    for x in R: k(x)
    A=AC[1]
    k("s_waitcnt lgkmcnt(2)")
    for p in range(4): k(f"v_pk_add_f32 {vr(XR+2*p,2)}, {vr(XR+2*p,2)}, {vr(XR+8+2*p,2)}")
    k("s_waitcnt lgkmcnt(0)")
    for p in range(4): k(f"v_pk_add_f32 {vr(XR+16+2*p,2)}, {vr(XR+16+2*p,2)}, {vr(A+2*p,2)}")
    for p in range(4): k(f"v_pk_add_f32 {vr(XR+2*p,2)}, {vr(XR+2*p,2)}, {vr(XR+16+2*p,2)}")
    for p in range(4): k(f"v_pk_mul_f32 {vr(XR+2*p,2)}, {vr(XR+2*p,2)}, {vr(Z1+24+2*p,2)}")
    for x in V[-4:]: k(x)
    k(S); T.mark("gst")
    stamp(k,"gissue")
    for g in wo: k("\n".join(g))
    T.mark("wo")
    T.wvm("gst")
    stamp(k,"gstored")
    flag(k,S_FG,t)
    if O.stop<4: return
    A3=88; WR=160; GR=104
    gregs=[104+4*n for n in range(4)]+[136+4*n for n in range(6)]+[208+4*n for n in range(12)]+[56,60]
    HF=64
    for e in range(8): k(f"v_lshlrev_b32 v{HF+2*e}, 16, v{HR+e}\nv_and_b32 v{HF+2*e+1}, 0xffff0000, v{HR+e}")
    k(f"s_mov_b32 s44, s32\ns_mov_b32 s45, s33\ns_mov_b32 s46, {2048*896}")
    T.wvm("wo")
    k("s_barrier")
    def wrd(s):
        return [f"ds_read_b128 {vr(WR+16*(s%3)+4*dt,4)}, v{WA if s<16 else WB} offset:{(s&15)*4096+dt*1024}" for dt in range(4)]
    def gload(n):
        if n&3==0: k(f"s_add_u32 s70, s{S_G}, s{S_JN+1+(n>>2)}")
        k(f"buffer_load_dwordx4 {vr(gregs[n],4)}, v{LA}, {WS}, s70 offen offset:{(n&3)*1024} sc1"); T.mark(f"g{n}")
    for s in range(2):
        for x in wrd(s): k(x)
        T.mark(f"w{s}")
    gq=list(range(24))
    for s in range(28):
        if s==4:
            stamp(k,"preg")
            poll(k, GP, t, "L_PG")
            stamp(k,"gpoll")
            for _ in range(8): gload(gq.pop(0))
        if s>=4: T.wvm(f"g{s-4}")
        T.wlg(f"w{s}")
        R=wrd(s+2) if s+2<28 else []
        B=vr(GO+4*s,4) if s<4 else vr(gregs[s-4],4)
        for dt in range(4):
            k(mf16(A3+4*dt, vr(WR+16*(s%3)+4*dt,4), B, vr(HF+4*dt,4) if s==0 else vr(A3+4*dt,4)))
            if R: k(R[dt])
            if s>=4 and dt==1 and gq: gload(gq.pop(0))
        T.mark(f"w{s+2}")
    stamp(k,"g3mm")
    for e in range(8): k(f"v_cvt_pk_bf16_f32 v{HF+e}, v{A3+2*e}, v{A3+2*e+1}")
    for h in range(2): k(f"buffer_store_dwordx4 {vr(HF+4*h,4)}, v{OA}, s[44:47], 0 offen offset:{64*h}")
```

```python
WS_EPOCH=0
WS_ST1=0x1000
WS_FH=0x8000
WS_FA=0x24000
WS_FZ=0x28000
WS_FG=0x44000
WS_ST3=0x64000
WS_CS=0xA4000
WS_HT=0x100000
WS_WI=0x2C0000
WS_WO=0x450000
WS_Z2N=0x520000
WS_G=0x8A0000
WS_DBG=0xD00000
WS_XT=0xE00000
WS_END=0x1200000
L_AW=21*544; L_APL=21*272
L_B0=4*L_AW; L_BW=32*544; L_BPL=32*272
L_U=L_B0+4*L_BW; L_UC=7600; U_Z=31
L_KC=L_U+2*L_UC; L_KCP=4160; L_KCC=16640
L_END1=L_KC+2*L_KCC
E_ODD=96
L_YW=9216; L_Y=L_U
L_S2=57344; L_S3=59392; L_ST2=65536; L_STW=24576; L_ZT=12288; L_Z1X=17408; L_WO=49152
E_ZERO=2444; E_DUMMY=2448
UROWS=[0,1,2,3,4,5,6,7,256,258,260,262,512,516,768,772,1024,1280,1536,1792,2048]
def rnd_bf16_int(l):
    if l<256: return l
    s=l.bit_length()-8
    q,r=divmod(l,1<<s); h=1<<(s-1)
    if r>h or (r==h and (q&1)): q+=1
    return q<<s
def pad(v): return v+(v>>4)
def roles(b):
    xcd=b&7; idx=b>>3
    if idx>=28: return dict(aux=xcd*4+idx-28)
    m=xcd*28+idx
    if idx<24: j=(xcd&1)*4+(idx>>3); i=(xcd>>1)*8+(idx&7)
    else: j=3; i=xcd*4+(idx&3)
    return dict(m=m,i=i,j=j)
```

```python
import sys, math, os
sys.path.insert(0,"work"); sys.path.insert(0,"f")
from asmgen import K, fl, hx, KARG, HEADER
import hz
from lay import *
NAME="sequential_preLN__ssm_conv_s4__mixer_gmlp__prompt_kernel"
class Opt: pass
O=Opt(); O.stop=99; O.diag=False; O.dout=False; O.exp=0; O.only=[]; O.dmacol=23; O.spin=1<<16; O.st1=7; O.bgu=30; O.w1a=8; O.w1b=8; O.pk=16; O.zpd=12; O.wolate=0
class RA:
    def __init__(s, lo, hi): s.p=lo; s.hi=hi
    def __call__(s, n=1, al=None):
        al = al or (2 if n>1 else 1)
        s.p=(s.p+al-1)//al*al; r=s.p; s.p+=n
        assert s.p<=s.hi, ("out of regs", s.p, s.hi)
        return r
class Trk:
    def __init__(s,k): s.k=k; s.m={}
    def mark(s,tag): s.m[tag]=len(s.k.L)
    def cnt(s,tag,pref): return sum(1 for l in s.k.L[s.m[tag]:] if l.strip().startswith(pref))
    def vm(s,tag): return min(s.cnt(tag,("buffer_","global_")),63)
    def lg(s,tag): return min(s.cnt(tag,("ds_",)),15)
    def wvm(s,tag): s.k(f"s_waitcnt vmcnt({s.vm(tag)})")
    def wlg(s,tag): s.k(f"s_waitcnt lgkmcnt({s.lg(tag)})")
G2={}
def vr(a,n): return f"v[{a}:{a+n-1}]" if n>1 else f"v{a}"
def ar(a,n): return f"a[{a}:{a+n-1}]" if n>1 else f"a{a}"
S_WSP=95; S_ROT=48; S_WI1=99; S_STE=100; S_STL=101
S_W=3; S_TAG=52; S_M=53; S_I=54; S_J=55; S_IDX=56; S_XCD=57; S_ONE=58
WS="s[40:43]"
nstamp=[0]
def stamp(k, name=""):
    if not O.diag: return
    if O.only and name not in O.only and name!="start": return
    n=nstamp[0]; nstamp[0]+=1
    assert n<11, name
    O.stamps.append(name)
    k(f"s_memtime s[{72+2*n}:{73+2*n}]")
def astamp(k, name):
    if not O.diag: return
    O.astamps.append(name); n=len(O.astamps)-1
    k(f"s_memtime s[{72+2*n}:{73+2*n}]")
def dump_stamps(k):
    if not O.diag: return
    k("s_memrealtime s[60:61]\ns_waitcnt lgkmcnt(0)")
    k(f"s_lshl_b32 s62, s2, 2\ns_add_u32 s62, s62, s{S_W}\ns_lshl_b32 s62, s62, 6")
    WS="s[40:43]"
    if O.dout:
        k(f"s_mov_b32 s48, s32\ns_mov_b32 s49, s33\ns_mov_b32 s50, {2048*896}\ns_mov_b32 s51, 0x20000"); WS="s[48:51]"
    else: k(f"s_add_u32 s62, s62, {WS_DBG}")
    for q in range(3):
        for e in range(4): k(f"v_mov_b32 v{4+e}, s{72+2*(4*q+e)}")
        k(f"buffer_store_dwordx4 v[4:7], off, {WS}, s62 offset:{16*q}\ns_nop 1")
    k(f"v_mov_b32 v4, s60\nv_mov_b32 v5, s4\nbuffer_store_dwordx2 v[4:5], off, {WS}, s62 offset:48\ns_waitcnt vmcnt(0)")

def cmul1(z,x,y): return f"v_pk_mul_f32 {vr(z,2)}, {vr(x,2)}, {vr(y,2)} op_sel:[0,0] op_sel_hi:[0,1]"
def cmul2(z,x,y): return f"v_pk_fma_f32 {vr(z,2)}, {vr(x,2)}, {vr(y,2)}, {vr(z,2)} op_sel:[1,1,0] op_sel_hi:[1,0,1] neg_lo:[1,0,0]"

def poll(k, vaddr, vtmp, lab):
    k(f"""s_mov_b32 s59, 0
    {lab}:
    buffer_load_dword v{vtmp}, v{vaddr}, {WS}, 0 offen sc1
    s_add_u32 s59, s59, 1
    s_waitcnt vmcnt(0)
    v_cmp_ne_u32 vcc, s{S_TAG}, v{vtmp}
    s_cmp_gt_u32 s59, {O.spin}
    s_cbranch_scc1 {lab}_x
    s_cbranch_vccnz {lab}
    {lab}_x:""")
def flag(k, soff_reg, vtmp):
    k(f"""v_mov_b32 v{vtmp}, s{S_TAG}
    s_mov_b64 exec, 1
    buffer_store_dword v{vtmp}, off, {WS}, s{soff_reg} sc1
    s_mov_b64 exec, -1""")

V_ROW=2
V_EP=9
def entry(k):
    k(f"""s_cmp_ge_u32 s2, 256
    s_cbranch_scc1 L_END
    s_load_dwordx16 s[4:19], s[0:1], 0
    s_load_dwordx16 s[20:35], s[0:1], 64
    s_load_dwordx2 s[36:37], s[0:1], 128
    s_getpc_b64 s[38:39]
    L_PC0:""")
    stamp(k,"start")
    if O.diag: k("s_memrealtime s[60:61]")
    k(f"""s_lshr_b32 s{S_IDX}, s2, 3
    s_and_b32 s{S_XCD}, s2, 7
    v_lshlrev_b32 v1, 4, v0
    s_lshl_b32 s59, s{S_IDX}, 12
    v_add_u32 v10, s59, v1
    v_min_u32 v10, L_TBL-L_PC0-16, v10
    global_load_dwordx4 v[252:255], v10, s[38:39]
    v_lshrrev_b32 v11, 6, v0
    s_mov_b32 s{S_ONE}, 0x3f803f80
    v_readfirstlane_b32 s{S_W}, v11""")
    early_addr(k)
    k(f"""s_cmp_ge_u32 s{S_IDX}, 28
    s_cbranch_scc1 L_AUX""")
def srd_ws(k):
    k(f"s_mov_b32 s40, s36\ns_mov_b32 s41, s37\ns_mov_b32 s42, {WS_END}\ns_mov_b32 s43, 0x20000")
V_XT=20
def early_addr(k):
    k(f"""v_and_b32 v56, 15, v0
    v_bfe_u32 v58, v0, 4, 2
    v_lshlrev_b32 v57, 3, v56
    v_mul_u32_u24 v56, 896, v56
    v_lshl_add_u32 v56, v58, 4, v56
    v_lshl_add_u32 v57, v58, 16, v57
    s_lshl_b32 s62, s{S_IDX}, 2
    s_add_u32 s62, s62, s{S_W}
    s_mul_i32 s69, s62, {16*896}
    s_mul_i32 s63, s{S_XCD}, 112
    s_add_u32 s69, s69, s63
    s_lshl_b32 s70, s62, 7
    s_mul_i32 s63, s{S_XCD}, {28*16384}
    s_add_u32 s70, s70, s63
    s_add_u32 s70, s70, {WS_XT}
    s_mul_i32 s59, s2, 7168
    v_mul_u32_u24 v59, 28, v0
    v_add_u32 v59, s59, v59
    s_mov_b32 s42, {WS_END}
    s_mov_b32 s43, 0x20000
    s_mov_b32 s46, {2048*896}
    s_mov_b32 s47, 0x20000""")
def early_load(k):
    k(f"""s_mov_b32 s40, s36
    s_mov_b32 s41, s37
    s_mov_b32 s44, s4
    s_mov_b32 s45, s5
    buffer_load_dword v{V_EP}, off, {WS}, 0 sc1
    buffer_load_dwordx4 v[{V_XT}:{V_XT+3}], v56, s[44:47], s69 offen
    buffer_load_dwordx4 v[{V_XT+4}:{V_XT+7}], v56, s[44:47], s69 offen offset:64
    global_load_dwordx4 v[{V_ROW}:{V_ROW+3}], v59, s[4:5]
    global_load_dwordx3 v[{V_ROW+4}:{V_ROW+6}], v59, s[4:5] offset:16""")
    if O.diag: k("s_mov_b32 s4, s60")
def xt_store(k, P):
    k(f"v_readfirstlane_b32 s{S_TAG}, v{V_EP}")
    for e in range(8): k(f"v_mov_b32 v{P+2*e}, v{V_XT+e}")
    k(f"s_add_u32 s{S_TAG}, s{S_TAG}, 1")
    for e in range(8): k(f"v_mov_b32 v{P+2*e+1}, s{S_TAG}")
    for e in range(8):
        if e==4: k(f"s_mov_b32 exec_hi, 0xffff\ns_add_u32 s70, s70, {12*16384}")
        k(f"buffer_store_dwordx2 {vr(P+2*e,2)}, v57, {WS}, s70 offen sc1")
        if e<7: k("s_add_u32 s70, s70, 16384")
    k(f"s_mov_b32 exec_hi, -1")
def stats_compute(k, S, Q, T):
    for i in range(7):
        k(f"v_dot2_f32_bf16 v{S}, v{V_ROW+i}, s{S_ONE}, {'0' if i==0 else 'v%d'%S}")
        k(f"v_dot2_f32_bf16 v{Q}, v{V_ROW+i}, v{V_ROW+i}, {'0' if i==0 else 'v%d'%Q}")
    for c in ["row_shr:1","row_shr:2","row_shr:4","row_shr:8"]:
        for r in (S,Q): k(f"v_add_f32_dpp v{r}, v{r}, v{r} {c} row_mask:0xf bank_mask:0xf bound_ctrl:0")
    for r in (S,Q): k(f"v_add_f32_dpp v{r}, v{r}, v{r} row_bcast:15 row_mask:0xa bank_mask:0xf")
    k(f"""v_mul_f32 v{S}, {fl(1/448)}, v{S}
    v_mul_f32 v{Q}, {fl(1/448)}, v{Q}
    v_fma_f32 v{Q}, -v{S}, v{S}, v{Q}
    v_max_f32 v{Q}, 0, v{Q}
    v_cvt_pk_bf16_f32 v{Q}, v{Q}, v{Q}
    v_and_b32 v{Q}, 0xffff0000, v{Q}
    v_add_f32 v{Q}, {fl(1e-5)}, v{Q}
    v_cvt_pk_bf16_f32 v{Q}, v{Q}, v{Q}
    v_and_b32 v{Q}, 0xffff0000, v{Q}
    v_sqrt_f32 v{Q}, v{Q}
    v_lshrrev_b32 v{V_EP}, 5, v0
    v_lshlrev_b32 v{V_EP}, 3, v{V_EP}
    v_cvt_pk_bf16_f32 v{T}, v{S}, v{Q}
    v_mov_b32 v{T+1}, s{S_TAG}
    s_lshl_b32 s59, s2, 6
    s_add_u32 s59, s59, {WS_ST1}
    s_mov_b32 exec_lo, 0x80000000
    s_mov_b32 exec_hi, 0x80000000
    buffer_store_dwordx2 v[{T}:{T+1}], v{V_EP}, {WS}, s59 offen sc1
    s_mov_b64 exec, -1""")

V_PAR=10
V_XG=20
V_TB=28
V_LANE=1
def main_part1(k):
    k(f"""s_mul_i32 s{S_M}, s{S_XCD}, 28
    s_add_u32 s{S_M}, s{S_M}, s{S_IDX}
    s_lshl_b32 s59, s{S_M}, 10
    v_lshl_add_u32 v58, v0, 2, s59
    s_lshr_b32 s62, s{S_W}, 1
    s_lshl_b32 s63, s{S_M}, 1
    s_add_u32 s62, s62, s63
    s_lshl_b32 s62, s62, 1
    v_mov_b32 v19, s62
    s_lshl_b32 s63, s{S_M}, 2
    v_mov_b32 v17, s63
    s_waitcnt lgkmcnt(0)""")
    stamp(k,"karg")
    early_load(k)
    for i in range(6): k(f"global_load_dword v{V_PAR+i}, v58, s[{6+2*i}:{7+2*i}]")
    k(f"global_load_ushort v16, v19, s[18:19]\nglobal_load_dword v18, v17, s[20:21]")
    k(f"""s_and_b32 s59, s{S_XCD}, 1
    s_lshl_b32 s59, s59, 2
    s_lshr_b32 s{S_J}, s{S_IDX}, 3
    s_add_u32 s{S_J}, s{S_J}, s59
    s_lshr_b32 s59, s{S_XCD}, 1
    s_lshl_b32 s59, s59, 3
    s_and_b32 s{S_I}, s{S_IDX}, 7
    s_add_u32 s{S_I}, s{S_I}, s59
    s_lshl_b32 s59, s{S_XCD}, 2
    s_and_b32 s62, s{S_IDX}, 3
    s_add_u32 s59, s59, s62
    s_cmp_ge_u32 s{S_IDX}, 24
    s_cselect_b32 s{S_J}, 3, s{S_J}
    s_cselect_b32 s{S_I}, s59, s{S_I}
    v_and_b32 v{V_LANE}, 63, v0""")
    ra=RA(60,256)
    Z=ra(4); a1=ra(); a2=ra()
    for e in range(4): k(f"v_mov_b32 v{Z+e}, 0")
    k(f"""v_min_u32 v{a1}, {U_Z*5-1}, v0
    v_lshlrev_b32 v{a1}, 4, v{a1}
    v_add_u32 v{a1}, {L_U}, v{a1}
    v_bfe_u32 v{a2}, v0, 2, 3
    v_mul_u32_u24 v{a2}, {L_KCP}, v{a2}
    v_and_b32 v{Z}, 3, v0
    v_lshl_add_u32 v{a2}, v{Z}, 4, v{a2}
    v_mov_b32 v{Z}, 0
    v_add_u32 v{a2}, {L_KC+4096}, v{a2}
    ds_write_b128 v{a1}, {vr(Z,4)}
    ds_write_b128 v{a1}, {vr(Z,4)} offset:{L_UC}
    ds_write_b128 v{a2}, {vr(Z,4)}""")
    stamp(k,"s3")
    RAa=ra(); RB=ra(); t0=ra(); t1=ra(); SA=ra(); GA=ra(); UA=ra(); WD=ra(4,1); FAD=ra()
    k(f"""s_mul_i32 s59, s{S_W}, {L_AW}
    v_lshrrev_b32 v{t1}, 5, v{V_LANE}
    v_and_b32 v{t0}, 31, v{V_LANE}
    v_mul_u32_u24 v{t0}, 272, v{t0}
    v_lshl_add_u32 v{t0}, v{t1}, 4, v{t0}
    v_add_u32 v{RAa}, s59, v{t0}
    s_mul_i32 s59, s{S_W}, {L_BW}
    s_add_u32 s59, s59, {L_B0}
    v_add_u32 v{RB}, s59, v{t0}
    s_mul_i32 s66, s{S_W}, {2*L_KCP}
    s_add_u32 s66, s66, {L_KC}
    s_add_u32 s65, s66, {L_KCP}
    v_lshl_add_u32 v{SA}, v{V_LANE}, 6, s66
    v_lshlrev_b32 v{GA}, 4, v{V_LANE}
    s_lshl_b32 s67, s{S_W}, 12
    s_lshl_b32 s64, s{S_M}, 14
    s_add_u32 s64, s64, s67
    s_add_u32 s64, s64, {WS_XT}
    s_add_u32 s67, s67, {WS_ST1}
    v_lshrrev_b32 v{UA}, 2, v0
    v_mul_u32_u24 v{UA}, 80, v{UA}
    v_and_b32 v{t0}, 3, v0
    v_lshl_add_u32 v{UA}, v{t0}, 4, v{UA}
    v_add_u32 v{UA}, {L_U+U_Z*80}, v{UA}""")
    if O.stop>=2:
        k(f"""v_lshrrev_b32 v{a1}, 4, v{V_LANE}
        v_and_b32 v{t0}, 15, v{V_LANE}
        v_xor_b32 v{t0}, v{t0}, v{a1}
        v_lshlrev_b32 v{t0}, 4, v{t0}
        v_lshl_add_u32 v{WD}, v{a1}, 12, v{t0}""")
        for q in range(1,4): k(f"v_xor_b32 v{WD+q}, {q*64+q*16384}, v{WD}")
        k(f"""s_lshl_b32 s59, s{S_J}, 2
        s_add_u32 s59, s59, s{S_W}
        s_lshr_b32 s63, s59, 1
        v_and_b32 v{t0}, 1, v{V_LANE}
        v_mul_u32_u24 v{t0}, 14, v{t0}
        v_add_lshl_u32 v{FAD}, v{t0}, s63, 7
        v_add_u32 v{FAD}, {WS_FA}, v{FAD}
        s_mul_i32 s{S_WI1}, s59, 28672
        s_add_u32 s{S_WI1}, s{S_WI1}, {WS_WI}
        s_lshl_b32 s62, s{S_I}, 18
        s_lshl_b32 s63, s{S_W}, 10
        s_add_u32 s62, s62, s63""")
        for tau in range(4): k(f"s_add_u32 s63, s{S_W}, {tau}\ns_and_b32 s63, s63, 3\ns_lshl_b32 s{S_WSP+tau}, s63, 16\ns_add_u32 s{S_WSP+tau}, s{S_WSP+tau}, s62\ns_mul_i32 s{S_ROT+tau}, s63, 7168")
        k(f"s_lshl_b32 s{S_STE}, s{S_W}, 14\ns_add_u32 s{S_STE}, s{S_STE}, 49152\ns_mul_i32 s{S_STL}, s{S_W}, 12288")
    CH=ra(28,2)
    AF=ra(64,4); BF=ra(64,4); ACC=ra(16,4)
    rb=RA(BF,BF+64)
    S=rb(); Q=rb(); T=rb(2)
    stamp(k,"s4")
    k("s_waitcnt vmcnt(10)")
    stamp(k,"tile")
    xt_store(k, AF)
    stamp(k,"xts")
    k(f"s_waitcnt vmcnt(16)")
    stamp(k,"rowsin")
    stats_compute(k,S,Q,T)
    stamp(k,"stats")
    k("s_waitcnt vmcnt(9)")
    stamp(k,"params")
    k(f"s_add_u32 s60, s38, L_TBL-L_PC0\ns_addc_u32 s61, s39, 0")
    k(f"v_lshlrev_b32 v59, 4, v0\nv_add_u32 v17, 4096, v59\nv_add_u32 v19, 12288, v59\nv_add_u32 v58, 20480, v59\nv_add_u32 v59, 24576, v59")
    for q,(r,o) in enumerate([(17,-4096),(17,0),(19,-4096),(19,0),(58,-4096),(58,0),(59,0)]):
        k(f"global_load_dwordx4 v[{V_TB+4*q}:{V_TB+4*q+3}], v{r}, s[60:61] offset:{o}")
    stamp(k,"tbl")
    DT=rb(); LG=rb(); E1=rb()
    L2E=math.log2(math.e); import struct
    Lhi=struct.unpack("<f",struct.pack("<f",L2E))[0]; Llo=L2E-Lhi
    k(f"""v_lshlrev_b32 v16, 16, v16
    s_mov_b32 s62, {fl(Lhi)}
    v_mul_f32 v{LG}, s62, v16
    v_fma_f32 v{E1}, v16, s62, -v{LG}
    v_fmac_f32 v{E1}, {fl(Llo)}, v16
    v_exp_f32 v{DT}, v{LG}
    v_mul_f32 v{E1}, {fl(math.log(2))}, v{E1}
    v_fmac_f32 v{DT}, v{DT}, v{E1}
    v_cvt_pk_bf16_f32 v{DT}, v{DT}, v{DT}""")
    M=[{},{}]
    for mk in range(2):
        for nm in ["LP","C","B","P1","P2","P3","P4","P6","P256","P512","P768","P1024"]: M[mk][nm]=rb(2)
        for q,nm in enumerate(["X","T","P8"]): M[mk][nm]=CH+6*mk+2*q
    def unp(dst, src, mk):
        return f"v_lshlrev_b32 v{dst}, 16, v{src}" if mk==0 else f"v_and_b32 v{dst}, 0xffff0000, v{src}"
    DTP=rb(2)
    k(f"v_and_b32 v{DTP}, 0xffff0000, v{DT}")
    for mk in range(2):
        m=M[mk]
        k(unp(m['LP'],V_PAR+0,mk)); k(unp(m['LP']+1,V_PAR+1,mk))
        k(unp(m['B'],V_PAR+2,mk)); k(unp(m['B']+1,V_PAR+3,mk))
        k(unp(m['C'],V_PAR+4,mk)); k(unp(m['C']+1,V_PAR+5,mk))
    k(f"s_mov_b32 s62, {fl(L2E)}\ns_mov_b32 s63, {fl(1/(2*math.pi))}")
    k(f"s_mul_i32 s59, s{S_W}, {L_AW}\ns_mov_b32 m0, s59")
    for mk in range(2):
        m=M[mk]
        k(f"v_pk_mul_f32 {vr(m['LP'],2)}, {vr(m['LP'],2)}, {vr(DTP,2)} op_sel_hi:[1,0]")
        k(f"v_pk_mul_f32 {vr(m['B'],2)}, {vr(m['B'],2)}, {vr(DTP,2)} op_sel_hi:[1,0]")
    for mk in range(2):
        m=M[mk]
        k(f"v_pk_mul_f32 {vr(m['LP'],2)}, {vr(m['LP'],2)}, s[62:63]")
        k(cmul1(m['X'],m['C'],m['B']))
    for mk in range(2):
        m=M[mk]
        k(f"v_pk_fma_f32 {vr(m['X'],2)}, {vr(m['C'],2)}, {vr(m['B'],2)}, {vr(m['X'],2)} op_sel:[1,1,0] op_sel_hi:[1,0,1] neg_lo:[1,0,0] neg_hi:[1,0,1]")
    for (nm,sc,cj) in (("P1",1.0,0),("P8",8.0,1),("P256",256.0,0)):
        for mk in range(2):
            m=M[mk]; e=m['C']; p=m['C']+1
            if sc==1.0:
                k(f"v_exp_f32 v{e}, v{m['LP']}\nv_fract_f32 v{p}, v{m['LP']+1}")
            else:
                k(f"v_mul_f32 v{e}, {fl(sc)}, v{m['LP']}\nv_mul_f32 v{p}, {fl(-sc if cj else sc)}, v{m['LP']+1}")
                k(f"v_exp_f32 v{e}, v{e}\nv_fract_f32 v{p}, v{p}")
        for mk in range(2):
            m=M[mk]; p=m['C']+1
            k(f"v_cos_f32 v{m[nm]}, v{p}\nv_sin_f32 v{m[nm]+1}, v{p}")
        for mk in range(2):
            m=M[mk]
            k(f"v_pk_mul_f32 {vr(m[nm],2)}, {vr(m[nm],2)}, {vr(m['C'],2)} op_sel:[0,0] op_sel_hi:[1,0]")
    OUT=[CH+12+2*q for q in range(8)]; oc=[0]; pend=[]
    def flush():
        for p in pend: k(p)
        pend.clear()
    def put(nm, off, pl):
        o=OUT[oc[0]%8]; oc[0]+=1
        for mk in range(2):
            if nm is None: k(f"v_mov_b32 v{o+mk}, 0x3f80")
            else: k(f"v_cvt_pk_bf16_f32 v{o+mk}, v{M[mk][nm]}, v{M[mk][nm]+1}")
            pend.append(f"ds_write_addtid_b32 v{o+mk} offset:{off+mk*pl}")
        if len(pend)>=8: flush()
    def cm(z,x,y):
        for mk in range(2): k(cmul1(M[mk][z],M[mk][x],M[mk][y]))
        for mk in range(2): k(cmul2(M[mk][z],M[mk][x],M[mk][y]))
    put(None,0,L_APL); put("P1",272,L_APL); put("P256",8*272,L_APL)
    for (z,x,y,row) in [("P2","P1","P1",2),("P3","P2","P1",3),("P4","P2","P2",4),("T","P4","P1",5),("P6","P4","P2",6),("T","P4","P3",7),
                        ("T","P256","P2",9),("P3","P256","P4",10),("T","P256","P6",11),("P512","P256","P256",12),("T","P512","P4",13),
                        ("P768","P512","P256",14),("T","P768","P4",15),("P1024","P512","P512",16),("T","P1024","P256",17),("P3","P1024","P512",18),
                        ("T","P1024","P768",19),("P3","P1024","P1024",20)]:
        cm(z,x,y); put(z,row*272,L_APL)
    flush()
    CB_=40000
    k(f"s_mul_i32 s59, s{S_W}, {L_BW}\ns_add_u32 s68, s59, {L_B0-CB_}\ns_mov_b32 m0, s68")
    for kk in range(16): k(f"ds_read_b128 {vr(AF+kk*4,4)}, v{RAa} offset:{(kk>>3)*L_APL+(kk&7)*32}")
    stamp(k,"rows")
    def stdma():
        k(f"s_mov_b32 m0, s65\ns_nop 0")
        for q in range(4): k(f"buffer_load_dwordx4 v{GA}, {WS}, s64 offen offset:{q*1024} sc1 lds")
        k(f"s_mov_b32 m0, s66\ns_nop 0")
        for q in range(4): k(f"buffer_load_dwordx4 v{GA}, {WS}, s67 offen offset:{q*1024} sc1 lds")
    cur="X"
    for r in range(32):
        if r>0:
            nxt="T" if cur=="X" else "X"
            cm(nxt,cur,"P8"); cur=nxt
        put(cur,CB_+r*272,L_BPL)
        if r==O.dmacol:
            assert not pend
            stdma()
            k(f"s_mov_b32 m0, s68")
    assert not pend
    for kk in range(16): k(f"ds_read_b128 {vr(BF+kk*4,4)}, v{RB} offset:{(kk>>3)*L_BPL+(kk&7)*32}")
    stamp(k,"chain")
    G=2
    mfq=list(range(16))
    def mfma():
        kk=mfq.pop(0)
        k(f"v_mfma_f32_32x32x16_bf16 {vr(ACC,16)}, {vr(AF+kk*4,4)}, {vr(BF+kk*4,4)}, {'0' if kk==0 else vr(ACC,16)}")
    k(f"s_mov_b32 s59, 0\ns_waitcnt vmcnt(0)")
    stamp(k,"gather")
    XG=CH+12
    def strd():
        for q in range(4): k(f"ds_read_b128 {vr(G+4*q,4)}, v{SA} offset:{16*q}")
        for q in range(4): k(f"ds_read_b128 {vr(XG+4*q,4)}, v{SA} offset:{L_KCP+16*q}")
    strd()
    k("s_waitcnt lgkmcnt(8)")
    mfma(); mfma(); mfma()
    k("L_ST1:\ns_waitcnt lgkmcnt(0)")
    k(f"v_xor_b32 v{t0}, s{S_TAG}, v{G+1}\nv_xor_b32 v{a1}, s{S_TAG}, v{XG+1}")
    for t in range(1,8): k(f"v_xad_u32 v{t0}, v{G+2*t+1}, s{S_TAG}, v{t0}\nv_xad_u32 v{a1}, v{XG+2*t+1}, s{S_TAG}, v{a1}")
    k(f"""v_or_b32 v{t0}, v{t0}, v{a1}
    v_cmp_ne_u32 vcc, 0, v{t0}
    s_cbranch_vccz L_ST1_x
    s_add_u32 s59, s59, 1
    s_cmp_gt_u32 s59, {O.spin}
    s_cbranch_scc1 L_ST1_x""")
    stdma()
    k("s_waitcnt vmcnt(0)")
    strd()
    k("s_branch L_ST1\nL_ST1_x:")
    if O.diag: k("s_mov_b32 s94, s59")
    XS=BF; UP=G; UO=V_XT
    prep=[]
    for t in range(8):
        g=G+2*t; x=XG+2*t
        prep.append(f"v_and_b32 v{x+1}, 0xffff0000, v{g}")
        prep.append(f"v_lshlrev_b32 v{g+1}, 16, v{g}")
        prep.append(f"v_rcp_f32 v{x+1}, v{x+1}")
        prep.append(f"v_lshlrev_b32 v{XS+2*t}, 16, v{x}")
        prep.append(f"v_and_b32 v{XS+2*t+1}, 0xffff0000, v{x}")
        prep.append(f"v_sub_f32 v{g}, v{XS+2*t}, v{g+1}")
        prep.append(f"v_sub_f32 v{g+1}, v{XS+2*t+1}, v{g+1}")
        prep.append(f"v_mul_f32 v{g}, v{g}, v{x+1}")
        prep.append(f"v_mul_f32 v{g+1}, v{g+1}, v{x+1}")
    for c in range(2):
        for p in range(4): prep.append(f"v_cvt_pk_bf16_f32 v{UO+4*c+p}, v{UP+4*p+c}, v{UP+4*p+2+c}")
    while mfq:
        mfma()
        for _ in range(5): k(prep.pop(0))
    for p in prep: k(p)
    EW=V_TB+19
    k(f"ds_write_b128 v{UA}, {vr(UO,4)}\nds_write_b128 v{UA}, {vr(UO+4,4)} offset:{L_UC}")
    for v in range(4): k(f"ds_write_b32 v{EW}, v{ACC+v} offset:{4*v}")
    for v in range(4,12): k(f"ds_write_b32 v{EW+v-3}, v{ACC+v}")
    k(f"""s_mul_i32 s59, s{S_W}, {L_AW}
    s_and_b32 s62, s{S_W}, 1
    s_mul_i32 s62, s62, {E_ODD}
    s_add_u32 s59, s59, s62
    v_mov_b32 v{t0}, s59
    ds_write_b32 v{t0}, v{Z+1} offset:{E_ZERO*4}""")
    DK=RAa; CW=RB; AT0=SA; AT1=GA; BA=UA; FA=a2
    k(f"""s_lshr_b32 s59, s{S_W}, 1
    s_lshl_b32 s59, s59, 4
    v_lshrrev_b32 v{DK}, s59, v18
    v_lshlrev_b32 v{DK}, 16, v{DK}
    v_and_b32 v{t0}, 127, v0
    v_cmp_eq_u32 vcc, 127, v{t0}
    v_cndmask_b32 v{DK}, 0, v{DK}, vcc
    s_waitcnt lgkmcnt(0)
    s_barrier""")
    stamp(k,"kgen")
    T=Trk(k); G2['T']=T
    GV=AF
    for x in range(19): k(f"ds_read2st64_b32 {vr(GV+2*x,2)}, v{V_TB+x} offset0:0 offset1:{(L_AW+E_ODD)//256}")
    full=O.stop>=2
    import gen2
    def wsp_dma(u, sbase, slot):
        kq,tau=divmod(u,4); out=[]
        for q in range(4):
            g=[f"s_add_u32 m0, s{sbase}, {slot*4096+q*1024}"]
            if q==0: g.append(f"s_add_u32 s71, s{S_WSP+tau}, {kq*256}")
            g.append(f"buffer_load_dwordx4 v{(gen2.gen_WD[0] or WD)+q}, s[44:47], s71 offen lds")
            out.append(g)
        return out
    G2['wsp_dma']=wsp_dma
    st1=[]
    if full:
        for u in range(O.st1): st1+= wsp_dma(u, S_STE, u) if u<4 else wsp_dma(u, S_STL, u-4)
        k(f"s_mov_b32 s44, s26\ns_mov_b32 s45, s27\ns_mov_b32 s46, {2048*4096}")
        k(f"buffer_load_dword v{a1}, v{FAD}, {WS}, 0 offen sc1"); T.mark("fa")
        for g in st1[:8]: k("\n".join(g))
        st1=st1[8:]
    CV=BF+32
    k(f"""s_lshr_b32 s59, s{S_W}, 1
    s_mul_i32 s59, s59, {L_KCC}
    s_and_b32 s62, s{S_W}, 1
    s_lshl_b32 s62, s62, 11
    s_add_u32 s59, s59, s62
    s_add_u32 s59, s59, {L_KC}
    v_lshl_add_u32 v{CW}, v{V_LANE}, 5, s59""")
    k(f"""s_lshr_b32 s59, s{S_W}, 1
    s_mul_i32 s62, s59, {L_KCC}
    s_and_b32 s63, s{S_W}, 1
    s_lshl_b32 s64, s63, 10
    s_sub_u32 s62, s62, s64
    s_add_u32 s62, s62, {L_KC+2044*2-64*15}
    v_and_b32 v{t0}, 3, v{V_LANE}
    v_mul_u32_u24 v{AT0}, {L_KCP}, v{t0}
    v_and_b32 v{t0}, 28, v{V_LANE}
    v_lshlrev_b32 v{t0}, 1, v{t0}
    v_sub_u32 v{AT0}, v{AT0}, v{t0}
    v_lshl_add_u32 v{AT0}, v{t1}, 4, v{AT0}
    v_add_u32 v{AT0}, s62, v{AT0}
    v_subrev_u32 v{AT1}, 2048, v{AT0}
    s_mul_i32 s62, s59, {L_UC}
    s_mul_i32 s64, s63, 16*80
    s_sub_u32 s62, s62, s64
    s_add_u32 s62, s62, {L_U+(U_Z-15)*80}
    v_and_b32 v{t0}, 31, v{V_LANE}
    v_mul_u32_u24 v{BA}, 80, v{t0}
    v_lshl_add_u32 v{BA}, v{t1}, 4, v{BA}
    v_add_u32 v{BA}, s62, v{BA}""")
    k("s_waitcnt lgkmcnt(9)")
    for x in range(10): k(f"v_add_f32 v{GV+2*x}, v{GV+2*x}, v{GV+2*x+1}")
    k("s_waitcnt lgkmcnt(0)")
    for x in range(10,19): k(f"v_add_f32 v{GV+2*x}, v{GV+2*x}, v{GV+2*x+1}")
    k(f"v_add_f32 v{GV+30}, v{GV+30}, v{DK}")
    for cp in (3,2,1,0):
        for h in range(2):
            for q in range(4):
                x=3-cp+2*(4*h+q)
                k(f"v_cvt_pk_bf16_f32 v{CV+cp*8+4*h+q}, v{GV+2*x}, v{GV+2*x+2}")
        for h in range(2): k(f"ds_write_b128 v{CW}, {vr(CV+cp*8+4*h,4)} offset:{cp*L_KCP+16*h}")
    LA=10
    wi2=[]
    if full:
        k(f"v_lshlrev_b32 v{LA}, 4, v{V_LANE}")
        T.wvm("fa")
        k(f"v_cmp_ne_u32 vcc, s{S_TAG}, v{a1}\ns_cbranch_vccz L_PA_x")
        poll(k, FAD, a1, "L_PA")
        for g in range(4):
            for s_ in range(7):
                a=112+(g*7+s_)*4; gr=[]
                if s_==0: gr.append(f"s_add_u32 s70, s{S_WI1}, s{S_ROT+g}\ns_add_u32 s70, s70, {28*28672}")
                if s_==4: gr.append("s_add_u32 s70, s70, 4096")
                gr.append(f"buffer_load_dwordx4 {ar(a,4)}, v{LA}, {WS}, s70 offen offset:{(s_&3)*1024} sc1")
                wi2.append(gr)
    k("s_waitcnt lgkmcnt(0)\ns_barrier")
    stamp(k,"copies")
    bg=[]
    while st1 or wi2:
        if wi2: bg.append(wi2.pop(0))
        if st1: bg.append(st1.pop(0))
    Y0=ACC; Y1=BF+16
    def rd(u):
        mp,ks=divmod(u,2); b=AF+(u%4)*16; o=64*(15-mp)+32*ks
        return [f"ds_read_b64 {vr(b,2)}, v{AT0} offset:{o}", f"ds_read_b64 {vr(b+2,2)}, v{AT0} offset:{o+8}",
                f"ds_read_b128 {vr(b+8,4)}, v{BA} offset:{(15-mp)*80+32*ks}", f"ds_read_b128 {vr(b+12,4)}, v{BA} offset:{(15-mp)*80+32*ks+2560}",
                f"ds_read_b64 {vr(b+4,2)}, v{AT1} offset:{o}", f"ds_read_b64 {vr(b+6,2)}, v{AT1} offset:{o+8}"]
    for x in rd(0)+rd(1): k(x)
    YA=CW; YR=DK; HA=FA
    post=[f"s_mul_i32 s59, s{S_W}, {L_YW}", f"s_add_u32 s59, s59, {L_Y}", f"v_and_b32 v{t0}, 31, v{V_LANE}", f"v_mul_u32_u24 v{YA}, 144, v{t0}", f"v_lshl_add_u32 v{YA}, v{t1}, 4, v{YA}",
      f"v_add_u32 v{YA}, s59, v{YA}", f"v_lshrrev_b32 v{t0}, 2, v0", f"v_mul_u32_u24 v{YR}, 144, v{t0}", f"v_and_b32 v{t0}, 3, v0",
      f"v_lshl_add_u32 v{YR}, v{t0}, 5, v{YR}", f"v_add_u32 v{YR}, {L_Y}, v{YR}", f"v_lshrrev_b32 v{t0}, 3, v0", f"v_mul_u32_u24 v{HA}, 57344, v{t0}", f"s_and_b32 s59, s{S_M}, 1",
      f"s_lshl_b32 s59, s59, 2", f"v_and_b32 v{t0}, 7, v0", f"v_xor_b32 v{t0}, s59, v{t0}", f"v_lshl_add_u32 v{HA}, v{t0}, 4, v{HA}",
      f"s_lshl_b32 s62, s{S_M}, 8", f"s_add_u32 s62, s62, {WS_HT}",
      f"s_lshl_b32 s59, s{S_M}, 2", f"s_add_u32 s59, s59, s{S_W}", f"s_lshl_b32 s59, s59, 7", f"s_add_u32 s63, s59, {WS_FH}"]
    if full:
        import gen2
        post+=gen2.conv_shadow_ops()
    nbg=len(bg); done=0; NU=O.bgu
    for u in range(32):
        b=AF+(u%4)*16
        R=rd(u+2) if u<30 else []
        k(f"s_waitcnt lgkmcnt({6 if u<31 else 0})")
        c0='0' if u==0 else vr(Y0,16); c1='0' if u==0 else vr(Y1,16)
        k(f"v_mfma_f32_32x32x16_bf16 {vr(Y0,16)}, {vr(b,4)}, {vr(b+8,4)}, {c0}")
        for x in R[:3]: k(x)
        if post: k(post.pop(0))
        k(f"v_mfma_f32_32x32x16_bf16 {vr(Y1,16)}, {vr(b,4)}, {vr(b+12,4)}, {c1}")
        for x in R[3:]: k(x)
        if post: k(post.pop(0))
        k(f"v_mfma_f32_32x32x16_bf16 {vr(Y1,16)}, {vr(b+4,4)}, {vr(b+8,4)}, {vr(Y1,16)}")
        want=min(nbg,-(-nbg*(u+1)//NU))
        n=0
        while done<want: k("\n".join(bg[done])); done+=1; n+=1
        if n==0 and post: k(post.pop(0))
    assert done==nbg
    for x in post: k(x)
    T.mark("bgc")
    stamp(k,"conv")
    k("s_barrier")
    for q in range(4): k(f"ds_write_b128 v{YA}, {vr(Y0+4*q,4)} offset:{32*q}")
    for q in range(4): k(f"ds_write_b128 v{YA}, {vr(Y1+4*q,4)} offset:{32*q+4608}")
    k("s_waitcnt lgkmcnt(0)\ns_barrier")
    YV=AF
    for c in range(2):
        for mh in range(2):
            for h in range(2): k(f"ds_read_b128 {vr(YV+c*16+mh*8+4*h,4)}, v{YR} offset:{(2*c+mh)*L_YW+16*h}")
    HO=BF+32
    for c in range(2):
        k(f"s_waitcnt lgkmcnt({4 if c==0 else 0})")
        y=YV+c*16
        for p in range(4): k(f"v_pk_add_f32 {vr(y+2*p,2)}, {vr(y+2*p,2)}, {vr(y+8+2*p,2)}")
        for t in range(8): k(f"v_add_f32 v{y+t}, v{y+t}, v{XS+2*t+c}")
        for p in range(4): k(f"v_cvt_pk_bf16_f32 v{HO+4*c+p}, v{y+2*p}, v{y+2*p+1}")
        k(f"buffer_store_dwordx4 {vr(HO+4*c,4)}, v{HA}, {WS}, s62 offen offset:{128*c} sc1")
    T.mark("hst")
    stamp(k,"hissue")
    G2.update(WD=WD, t0=t0, LA=LA)
    if not full:
        k("s_waitcnt vmcnt(0)")
        stamp(k,"hstored")
        flag(k,63,t0)

def aux(k):
    k("L_AUX:\ns_waitcnt lgkmcnt(0)")
    astamp(k,"karg")
    early_load(k)
    k(f"""s_lshl_b32 s{S_M}, s{S_XCD}, 2
    s_add_u32 s{S_M}, s{S_M}, s{S_IDX}
    s_sub_u32 s{S_M}, s{S_M}, 28
    v_and_b32 v{V_LANE}, 63, v0
    s_cmp_ge_u32 s{S_M}, 28
    s_cbranch_scc1 L_AUX_ST""")
    k(f"s_mov_b32 s64, s24\ns_mov_b32 s65, s25\ns_mov_b32 s66, {448*1792*2}\ns_mov_b32 s67, 0x20000")
    k(f"s_mov_b32 s48, s30\ns_mov_b32 s49, s31\ns_mov_b32 s50, {896*448*2}\ns_mov_b32 s51, 0x20000")
    k(f"""v_lshrrev_b32 v28, 3, v{V_LANE}
    s_mul_i32 s59, s{S_W}, 112
    v_add_u32 v28, s59, v28
    v_mul_u32_u24 v28, 3584, v28
    v_bfe_u32 v29, v{V_LANE}, 4, 1
    v_lshlrev_b32 v29, 2, v29
    v_and_b32 v30, 7, v{V_LANE}
    v_xor_b32 v29, v29, v30
    v_lshl_add_u32 v28, v29, 4, v28
    s_lshl_b32 s62, s{S_M}, 7
    s_mul_i32 s63, s{S_W}, 14336""")
    def wdma(): k(f"s_mov_b32 m0, s63\ns_add_u32 s63, s63, 1024\nbuffer_load_dwordx4 v28, s[64:67], s62 offen lds\ns_add_u32 s62, s62, 28672")
    NE=4
    for q in range(NE): wdma()
    k(f"""v_bfe_u32 v32, v{V_LANE}, 2, 2
    v_lshrrev_b32 v33, 5, v{V_LANE}
    v_lshl_add_u32 v33, v33, 3, v32
    v_lshlrev_b32 v33, 7, v33
    v_bfe_u32 v34, v{V_LANE}, 4, 1
    v_lshlrev_b32 v34, 1, v34
    v_bfe_u32 v35, v{V_LANE}, 1, 1
    v_add_u32 v34, v34, v35
    v_bfe_u32 v35, v{V_LANE}, 3, 1
    v_lshlrev_b32 v35, 2, v35
    v_xor_b32 v34, v34, v35
    v_lshl_add_u32 v33, v34, 4, v33
    v_and_b32 v35, 1, v{V_LANE}
    v_lshl_add_u32 v33, v35, 3, v33
    s_mul_i32 s59, s{S_W}, 14336
    v_add_u32 v33, s59, v33
    v_xor_b32 v34, 64, v33
    v_lshlrev_b32 v29, 4, v{V_LANE}
    s_mul_i32 s68, s{S_M}, {2*28672}
    s_mul_i32 s59, s{S_W}, 7168
    s_add_u32 s68, s68, s59
    s_add_u32 s68, s68, {WS_WI}
    s_add_u32 s71, s68, 28672
    s_waitcnt vmcnt({NE+2})""")
    astamp(k,"tile")
    xt_store(k, 130)
    k(f"s_waitcnt vmcnt({NE+8})")
    stats_compute(k,30,31,36)
    astamp(k,"stats")
    for q in range(NE,14): wdma()
    k(f"""s_mul_i32 s62, s{S_M}, 28672
    s_mul_i32 s63, s{S_W}, 7168
    s_add_u32 s62, s62, s63
    s_add_u32 s63, s63, 57344""")
    for q in range(7):
        k(f"s_mov_b32 m0, s63\ns_add_u32 s63, s63, 1024\nbuffer_load_dwordx4 v29, s[48:51], s62 offen lds\ns_add_u32 s62, s62, 1024")
    astamp(k,"dmaiss")
    F=40
    for q in range(7):
        last=2*q+1
        after = (13-last) + 7 + (9 if last<NE else 0) + 2*q
        k(f"s_waitcnt vmcnt({after})")
        for T in range(2):
            for p in range(2): k(f"ds_read_b64_tr_b16 {vr(F+8*q+4*T+2*p,2)}, v{33+T} offset:{q*2048+p*512}")
        k("s_waitcnt lgkmcnt(0)")
        o=(q&3)*1024
        k(f"buffer_store_dwordx4 {vr(F+8*q,4)}, v29, {WS}, s68 offen offset:{o} sc1")
        k(f"buffer_store_dwordx4 {vr(F+8*q+4,4)}, v29, {WS}, s71 offen offset:{o} sc1")
        if q==3: k("s_add_u32 s68, s68, 4096\ns_add_u32 s71, s71, 4096")
        for e in range(4):
            for T in range(2): k(f"v_dot2_f32_bf16 v{30+T}, v{F+8*q+4*T+e}, s{S_ONE}, {'0' if q==0 and e==0 else 'v%d'%(30+T)}")
    astamp(k,"wiiss")
    k(f"""v_permlane32_swap_b32 v30, v31
    v_add_f32 v30, v30, v31
    v_lshlrev_b32 v31, 2, v0
    v_add_u32 v31, 90112, v31
    ds_write_b32 v31, v30
    v_lshlrev_b32 v31, 2, v{V_LANE}
    v_add_u32 v32, 90112, v31
    v_lshrrev_b32 v24, 2, v{V_LANE}
    v_mul_u32_u24 v24, 896, v24
    v_and_b32 v25, 3, v{V_LANE}
    v_lshl_add_u32 v24, v25, 4, v24
    v_add_u32 v24, 57344, v24
    s_waitcnt vmcnt(14) lgkmcnt(0)
    s_barrier
    s_cmp_lg_u32 s{S_W}, 0
    s_cbranch_scc1 L_AUX_NOCS
    ds_read_b32 v36, v32 offset:256
    ds_read_b32 v37, v32 offset:512
    ds_read_b32 v38, v32 offset:768
    s_lshl_b32 s59, s{S_M}, 8
    s_add_u32 s59, s59, {WS_CS}
    s_waitcnt lgkmcnt(0)
    v_add_f32 v30, v30, v36
    v_add_f32 v37, v37, v38
    v_add_f32 v30, v30, v37
    buffer_store_dword v30, v31, {WS}, s59 offen sc1
    L_AUX_NOCS:""")
    G=100
    for q in range(7):
        k(f"s_mul_i32 s59, s{S_W}, 7\ns_add_u32 s59, s59, {q}\ns_lshr_b32 s62, s59, 1\ns_lshl_b32 s62, s62, 6\ns_and_b32 s59, s59, 1\ns_lshl_b32 s59, s59, 3\ns_add_u32 s59, s59, s62\nv_add_u32 v25, s59, v24")
        for p in range(2): k(f"ds_read_b64_tr_b16 {vr(G+4*q+2*p,2)}, v25 offset:{p*16*896}")
    k(f"""s_lshl_b32 s63, s{S_M}, 7
    s_add_u32 s63, s63, {WS_FA}
    s_waitcnt vmcnt(0)
    s_barrier
    s_cmp_lg_u32 s{S_W}, 0
    s_cbranch_scc1 L_AUX_NF1""")
    flag(k,63,30)
    k("L_AUX_NF1:\ns_waitcnt lgkmcnt(0)")
    astamp(k,"wiflag")
    for q in range(7):
        k(f"""s_mul_i32 s59, s{S_W}, 7
        s_add_u32 s59, s59, {q}
        s_lshr_b32 s62, s59, 2
        s_and_b32 s59, s59, 3
        s_mul_i32 s62, s62, 28
        s_add_u32 s62, s62, s{S_M}
        s_lshl_b32 s62, s62, 2
        s_add_u32 s62, s62, s59
        s_lshl_b32 s62, s62, 10
        s_add_u32 s62, s62, {WS_WO}
        buffer_store_dwordx4 {vr(G+4*q,4)}, v29, {WS}, s62 offen sc1""")
    k(f"""s_add_u32 s63, s63, 4096
    s_waitcnt vmcnt(0)
    s_barrier""")
    astamp(k,"wo")
    k(f"""s_cmp_lg_u32 s{S_W}, 0
    s_cbranch_scc1 L_FIN""")
    flag(k,63,30)
    k("s_branch L_FIN\nL_AUX_ST:\ns_waitcnt vmcnt(0)")
    xt_store(k, 130)
    stats_compute(k,30,31,36)
    k("s_branch L_FIN")

def table():
    T=[[0]*28 for _ in range(256)]
    for tid in range(256):
        w=tid>>6; lane=tid&63; c=w>>1; g=(w&1)*64+lane
        for x in range(19):
            lag=2047-16*g-x
            dw=E_ZERO if lag<0 else pad(rnd_bf16_int(lag))
            T[tid][x]=2*c*L_AW+4*dw
        r=lane&31; hh=lane>>5
        eb=w*L_AW+(w&1)*E_ODD
        def ea(v):
            row=8*(v>>2)+4*hh+(v&3)
            return eb+4*(8*r+(r>>1)+(pad(UROWS[row]) if row<len(UROWS) else E_DUMMY))
        T[tid][19]=ea(0)
        for v in range(4,12): T[tid][19+v-3]=ea(v)
    out=[]
    for blk in range(7):
        for tid in range(0,256,2):
            out.append(".long "+",".join(str(T[t][4*blk+e]) for t in (tid,tid+1) for e in range(4)))
    return out

def build(path):
    O.stamps=[]; O.astamps=['start']; nstamp[0]=0
    k=K(NAME, vgpr=256, agpr=256, sgpr=102)
    entry(k)
    main_part1(k)
    if O.stop>=2:
        import gen2
        gen2.rest(k)
    k("L_FIN:")
    if O.exp==1: O.diag=True
    dump_stamps(k)
    k(f"""s_or_b32 s59, s2, s{S_W}
    s_cmp_lg_u32 s59, 0
    s_cbranch_scc1 L_END
    s_mov_b32 s59, 0""")
    flag(k,59,4)
    k("s_waitcnt vmcnt(0)\nL_END:\ns_endpgm")
    aux(k)
    L,tot=hz.fix(k.L)
    k.L=L+[".p2align 8","L_TBL:"]+table()
    s=HEADER+"; @launch grid=(256,1,1) block=(256,1,1) lds=163840\n"
    s+='.amdgcn_target "amdgcn-amd-amdhsa--gfx950"\n.text\n'+k.text()+'.section .rodata,"a"\n'+k.kd()
    open(path,"w").write(s)
    open(path[:-2]+".stamps","w").write(repr((O.stamps,O.astamps)))
    print(path,"lines",len(k.L),"hazard nops",tot)
if __name__=="__main__":
    import argparse
    ap=argparse.ArgumentParser(); ap.add_argument("out"); ap.add_argument("--stop",type=int,default=99); ap.add_argument("--diag",action="store_true"); ap.add_argument("--dout",action="store_true"); ap.add_argument("--exp",type=int,default=0); ap.add_argument("--only",default="")
    a=ap.parse_args(); O.stop=a.stop; O.diag=a.diag; O.dout=a.dout; O.exp=a.exp; O.only=[x for x in a.only.split(',') if x]
    sys.modules["gen"]=sys.modules["__main__"]
    build(a.out)
```

```python
import sys, math, os
sys.path.insert(0,"work"); sys.path.insert(0,"f")
from asmgen import K, fl, hx, KARG, HEADER
import hz
from lay import *
NAME="sequential_preLN__ssm_conv_s4__mixer_gmlp__prompt_kernel"
class Opt: pass
O=Opt(); O.stop=99; O.diag=False; O.dout=False; O.exp=0; O.only=[]; O.dmacol=23; O.spin=1<<16; O.st1=7; O.bgu=30; O.w1a=8; O.w1b=8; O.pk=16; O.zpd=12; O.wolate=0
class RA:
    def __init__(s, lo, hi): s.p=lo; s.hi=hi
    def __call__(s, n=1, al=None):
        al = al or (2 if n>1 else 1)
        s.p=(s.p+al-1)//al*al; r=s.p; s.p+=n
        assert s.p<=s.hi, ("out of regs", s.p, s.hi)
        return r
class Trk:
    def __init__(s,k): s.k=k; s.m={}
    def mark(s,tag): s.m[tag]=len(s.k.L)
    def cnt(s,tag,pref): return sum(1 for l in s.k.L[s.m[tag]:] if l.strip().startswith(pref))
    def vm(s,tag): return min(s.cnt(tag,("buffer_","global_")),63)
    def lg(s,tag): return min(s.cnt(tag,("ds_",)),15)
    def wvm(s,tag): s.k(f"s_waitcnt vmcnt({s.vm(tag)})")
    def wlg(s,tag): s.k(f"s_waitcnt lgkmcnt({s.lg(tag)})")
G2={}
def vr(a,n): return f"v[{a}:{a+n-1}]" if n>1 else f"v{a}"
def ar(a,n): return f"a[{a}:{a+n-1}]" if n>1 else f"a{a}"
S_WSP=95; S_ROT=48; S_WI1=99; S_STE=100; S_STL=101
S_W=3; S_TAG=52; S_M=53; S_I=54; S_J=55; S_IDX=56; S_XCD=57; S_ONE=58
WS="s[40:43]"
nstamp=[0]
def stamp(k, name=""):
    if not O.diag: return
    if O.only and name not in O.only and name!="start": return
    n=nstamp[0]; nstamp[0]+=1
    assert n<11, name
    O.stamps.append(name)
    k(f"s_memtime s[{72+2*n}:{73+2*n}]")
def astamp(k, name):
    if not O.diag: return
    O.astamps.append(name); n=len(O.astamps)-1
    k(f"s_memtime s[{72+2*n}:{73+2*n}]")
def dump_stamps(k):
    if not O.diag: return
    k("s_memrealtime s[60:61]\ns_waitcnt lgkmcnt(0)")
    k(f"s_lshl_b32 s62, s2, 2\ns_add_u32 s62, s62, s{S_W}\ns_lshl_b32 s62, s62, 6")
    WS="s[40:43]"
    if O.dout:
        k(f"s_mov_b32 s48, s32\ns_mov_b32 s49, s33\ns_mov_b32 s50, {2048*896}\ns_mov_b32 s51, 0x20000"); WS="s[48:51]"
    else: k(f"s_add_u32 s62, s62, {WS_DBG}")
    for q in range(3):
        for e in range(4): k(f"v_mov_b32 v{4+e}, s{72+2*(4*q+e)}")
        k(f"buffer_store_dwordx4 v[4:7], off, {WS}, s62 offset:{16*q}\ns_nop 1")
    k(f"v_mov_b32 v4, s60\nv_mov_b32 v5, s4\nbuffer_store_dwordx2 v[4:5], off, {WS}, s62 offset:48\ns_waitcnt vmcnt(0)")

def cmul1(z,x,y): return f"v_pk_mul_f32 {vr(z,2)}, {vr(x,2)}, {vr(y,2)} op_sel:[0,0] op_sel_hi:[0,1]"
def cmul2(z,x,y): return f"v_pk_fma_f32 {vr(z,2)}, {vr(x,2)}, {vr(y,2)}, {vr(z,2)} op_sel:[1,1,0] op_sel_hi:[1,0,1] neg_lo:[1,0,0]"

def poll(k, vaddr, vtmp, lab):
    k(f"""s_mov_b32 s59, 0
    {lab}:
    buffer_load_dword v{vtmp}, v{vaddr}, {WS}, 0 offen sc1
    s_add_u32 s59, s59, 1
    s_waitcnt vmcnt(0)
    v_cmp_ne_u32 vcc, s{S_TAG}, v{vtmp}
    s_cmp_gt_u32 s59, {O.spin}
    s_cbranch_scc1 {lab}_x
    s_cbranch_vccnz {lab}
    {lab}_x:""")
def flag(k, soff_reg, vtmp):
    k(f"""v_mov_b32 v{vtmp}, s{S_TAG}
    s_mov_b64 exec, 1
    buffer_store_dword v{vtmp}, off, {WS}, s{soff_reg} sc1
    s_mov_b64 exec, -1""")

V_ROW=2
V_EP=9
def entry(k):
    k(f"""s_cmp_ge_u32 s2, 256
    s_cbranch_scc1 L_END
    s_load_dwordx16 s[4:19], s[0:1], 0
    s_load_dwordx16 s[20:35], s[0:1], 64
    s_load_dwordx2 s[36:37], s[0:1], 128
    s_getpc_b64 s[38:39]
    L_PC0:""")
    if O.exp in (2,3):
        op="s_memtime" if O.exp==2 else "s_memrealtime"; N=24000 if O.exp==2 else 1000
        k(f"{op} s[60:61]\ns_waitcnt lgkmcnt(0)\nL_SPX:\n{op} s[62:63]\ns_waitcnt lgkmcnt(0)\ns_sub_u32 s62, s62, s60\ns_cmp_lt_u32 s62, {N}\ns_cbranch_scc1 L_SPX")
    stamp(k,"start")
    if O.diag: k("s_memrealtime s[60:61]")
    k(f"""s_lshr_b32 s{S_IDX}, s2, 3
    s_and_b32 s{S_XCD}, s2, 7
    v_lshlrev_b32 v1, 4, v0
    s_lshl_b32 s59, s{S_IDX}, 12
    v_add_u32 v10, s59, v1
    v_min_u32 v10, L_TBL-L_PC0-16, v10
    global_load_dwordx4 v[252:255], v10, s[38:39]
    v_lshrrev_b32 v11, 6, v0
    s_mov_b32 s{S_ONE}, 0x3f803f80
    v_readfirstlane_b32 s{S_W}, v11""")
    early_addr(k)
    k(f"""s_cmp_ge_u32 s{S_IDX}, 28
    s_cbranch_scc1 L_AUX""")
def srd_ws(k):
    k(f"s_mov_b32 s40, s36\ns_mov_b32 s41, s37\ns_mov_b32 s42, {WS_END}\ns_mov_b32 s43, 0x20000")
V_XT=20
def early_addr(k):
    k(f"""v_and_b32 v56, 15, v0
    v_bfe_u32 v58, v0, 4, 2
    v_lshlrev_b32 v57, 3, v56
    v_mul_u32_u24 v56, 896, v56
    v_lshl_add_u32 v56, v58, 4, v56
    v_lshl_add_u32 v57, v58, 16, v57
    s_lshl_b32 s62, s{S_IDX}, 2
    s_add_u32 s62, s62, s{S_W}
    s_mul_i32 s69, s62, {16*896}
    s_mul_i32 s63, s{S_XCD}, 112
    s_add_u32 s69, s69, s63
    s_lshl_b32 s70, s62, 7
    s_mul_i32 s63, s{S_XCD}, {28*16384}
    s_add_u32 s70, s70, s63
    s_add_u32 s70, s70, {WS_XT}
    s_mul_i32 s59, s2, 7168
    v_mul_u32_u24 v59, 28, v0
    v_add_u32 v59, s59, v59
    s_mov_b32 s42, {WS_END}
    s_mov_b32 s43, 0x20000
    s_mov_b32 s46, {2048*896}
    s_mov_b32 s47, 0x20000""")
def early_load(k):
    k(f"""s_mov_b32 s40, s36
    s_mov_b32 s41, s37
    s_mov_b32 s44, s4
    s_mov_b32 s45, s5
    buffer_load_dword v{V_EP}, off, {WS}, 0 sc1
    buffer_load_dwordx4 v[{V_XT}:{V_XT+3}], v56, s[44:47], s69 offen
    buffer_load_dwordx4 v[{V_XT+4}:{V_XT+7}], v56, s[44:47], s69 offen offset:64
    global_load_dwordx4 v[{V_ROW}:{V_ROW+3}], v59, s[4:5]
    global_load_dwordx3 v[{V_ROW+4}:{V_ROW+6}], v59, s[4:5] offset:16""")
    if O.diag: k("s_mov_b32 s4, s60")
def xt_store(k, P):
    k(f"v_readfirstlane_b32 s{S_TAG}, v{V_EP}")
    for e in range(8): k(f"v_mov_b32 v{P+2*e}, v{V_XT+e}")
    k(f"s_add_u32 s{S_TAG}, s{S_TAG}, 1")
    for e in range(8): k(f"v_mov_b32 v{P+2*e+1}, s{S_TAG}")
    for e in range(8):
        if e==4: k(f"s_mov_b32 exec_hi, 0xffff\ns_add_u32 s70, s70, {12*16384}")
        k(f"buffer_store_dwordx2 {vr(P+2*e,2)}, v57, {WS}, s70 offen sc1")
        if e<7: k("s_add_u32 s70, s70, 16384")
    k(f"s_mov_b32 exec_hi, -1")
def stats_compute(k, S, Q, T):
    for i in range(7):
        k(f"v_dot2_f32_bf16 v{S}, v{V_ROW+i}, s{S_ONE}, {'0' if i==0 else 'v%d'%S}")
        k(f"v_dot2_f32_bf16 v{Q}, v{V_ROW+i}, v{V_ROW+i}, {'0' if i==0 else 'v%d'%Q}")
    for c in ["row_shr:1","row_shr:2","row_shr:4","row_shr:8"]:
        for r in (S,Q): k(f"v_add_f32_dpp v{r}, v{r}, v{r} {c} row_mask:0xf bank_mask:0xf bound_ctrl:0")
    for r in (S,Q): k(f"v_add_f32_dpp v{r}, v{r}, v{r} row_bcast:15 row_mask:0xa bank_mask:0xf")
    k(f"""v_mul_f32 v{S}, {fl(1/448)}, v{S}
    v_mul_f32 v{Q}, {fl(1/448)}, v{Q}
    v_fma_f32 v{Q}, -v{S}, v{S}, v{Q}
    v_max_f32 v{Q}, 0, v{Q}
    v_cvt_pk_bf16_f32 v{Q}, v{Q}, v{Q}
    v_and_b32 v{Q}, 0xffff0000, v{Q}
    v_add_f32 v{Q}, {fl(1e-5)}, v{Q}
    v_cvt_pk_bf16_f32 v{Q}, v{Q}, v{Q}
    v_and_b32 v{Q}, 0xffff0000, v{Q}
    v_sqrt_f32 v{Q}, v{Q}
    v_lshrrev_b32 v{V_EP}, 5, v0
    v_lshlrev_b32 v{V_EP}, 3, v{V_EP}
    v_cvt_pk_bf16_f32 v{T}, v{S}, v{Q}
    v_mov_b32 v{T+1}, s{S_TAG}
    s_lshl_b32 s59, s2, 6
    s_add_u32 s59, s59, {WS_ST1}
    s_mov_b32 exec_lo, 0x80000000
    s_mov_b32 exec_hi, 0x80000000
    buffer_store_dwordx2 v[{T}:{T+1}], v{V_EP}, {WS}, s59 offen sc1
    s_mov_b64 exec, -1""")

V_PAR=10
V_XG=20
V_TB=28
V_LANE=1
def main_part1(k):
    k(f"""s_mul_i32 s{S_M}, s{S_XCD}, 28
    s_add_u32 s{S_M}, s{S_M}, s{S_IDX}
    s_lshl_b32 s59, s{S_M}, 10
    v_lshl_add_u32 v58, v0, 2, s59
    s_lshr_b32 s62, s{S_W}, 1
    s_lshl_b32 s63, s{S_M}, 1
    s_add_u32 s62, s62, s63
    s_lshl_b32 s62, s62, 1
    v_mov_b32 v19, s62
    s_lshl_b32 s63, s{S_M}, 2
    v_mov_b32 v17, s63
    s_waitcnt lgkmcnt(0)""")
    stamp(k,"karg")
    early_load(k)
    for i in range(6): k(f"global_load_dword v{V_PAR+i}, v58, s[{6+2*i}:{7+2*i}]")
    k(f"global_load_ushort v16, v19, s[18:19]\nglobal_load_dword v18, v17, s[20:21]")
    k(f"""s_and_b32 s59, s{S_XCD}, 1
    s_lshl_b32 s59, s59, 2
    s_lshr_b32 s{S_J}, s{S_IDX}, 3
    s_add_u32 s{S_J}, s{S_J}, s59
    s_lshr_b32 s59, s{S_XCD}, 1
    s_lshl_b32 s59, s59, 3
    s_and_b32 s{S_I}, s{S_IDX}, 7
    s_add_u32 s{S_I}, s{S_I}, s59
    s_lshl_b32 s59, s{S_XCD}, 2
    s_and_b32 s62, s{S_IDX}, 3
    s_add_u32 s59, s59, s62
    s_cmp_ge_u32 s{S_IDX}, 24
    s_cselect_b32 s{S_J}, 3, s{S_J}
    s_cselect_b32 s{S_I}, s59, s{S_I}
    v_and_b32 v{V_LANE}, 63, v0""")
    ra=RA(60,256)
    Z=ra(4); a1=ra(); a2=ra()
    for e in range(4): k(f"v_mov_b32 v{Z+e}, 0")
    k(f"""v_min_u32 v{a1}, {U_Z*5-1}, v0
    v_lshlrev_b32 v{a1}, 4, v{a1}
    v_add_u32 v{a1}, {L_U}, v{a1}
    v_bfe_u32 v{a2}, v0, 2, 3
    v_mul_u32_u24 v{a2}, {L_KCP}, v{a2}
    v_and_b32 v{Z}, 3, v0
    v_lshl_add_u32 v{a2}, v{Z}, 4, v{a2}
    v_mov_b32 v{Z}, 0
    v_add_u32 v{a2}, {L_KC+4096}, v{a2}
    ds_write_b128 v{a1}, {vr(Z,4)}
    ds_write_b128 v{a1}, {vr(Z,4)} offset:{L_UC}
    ds_write_b128 v{a2}, {vr(Z,4)}""")
    stamp(k,"s3")
    RAa=ra(); RB=ra(); t0=ra(); t1=ra(); SA=ra(); GA=ra(); UA=ra(); WD=ra(4,1); FAD=ra()
    k(f"""s_mul_i32 s59, s{S_W}, {L_AW}
    v_lshrrev_b32 v{t1}, 5, v{V_LANE}
    v_and_b32 v{t0}, 31, v{V_LANE}
    v_mul_u32_u24 v{t0}, 272, v{t0}
    v_lshl_add_u32 v{t0}, v{t1}, 4, v{t0}
    v_add_u32 v{RAa}, s59, v{t0}
    s_mul_i32 s59, s{S_W}, {L_BW}
    s_add_u32 s59, s59, {L_B0}
    v_add_u32 v{RB}, s59, v{t0}
    s_mul_i32 s66, s{S_W}, {2*L_KCP}
    s_add_u32 s66, s66, {L_KC}
    s_add_u32 s65, s66, {L_KCP}
    v_lshl_add_u32 v{SA}, v{V_LANE}, 6, s66
    v_lshlrev_b32 v{GA}, 4, v{V_LANE}
    s_lshl_b32 s67, s{S_W}, 12
    s_lshl_b32 s64, s{S_M}, 14
    s_add_u32 s64, s64, s67
    s_add_u32 s64, s64, {WS_XT}
    s_add_u32 s67, s67, {WS_ST1}
    v_lshrrev_b32 v{UA}, 2, v0
    v_mul_u32_u24 v{UA}, 80, v{UA}
    v_and_b32 v{t0}, 3, v0
    v_lshl_add_u32 v{UA}, v{t0}, 4, v{UA}
    v_add_u32 v{UA}, {L_U+U_Z*80}, v{UA}""")
    if O.stop>=2:
        k(f"""v_lshrrev_b32 v{a1}, 4, v{V_LANE}
        v_and_b32 v{t0}, 15, v{V_LANE}
        v_xor_b32 v{t0}, v{t0}, v{a1}
        v_lshlrev_b32 v{t0}, 4, v{t0}
        v_lshl_add_u32 v{WD}, v{a1}, 12, v{t0}""")
        for q in range(1,4): k(f"v_xor_b32 v{WD+q}, {q*64+q*16384}, v{WD}")
        k(f"""s_lshl_b32 s59, s{S_J}, 2
        s_add_u32 s59, s59, s{S_W}
        s_lshr_b32 s63, s59, 1
        v_and_b32 v{t0}, 1, v{V_LANE}
        v_mul_u32_u24 v{t0}, 14, v{t0}
        v_add_lshl_u32 v{FAD}, v{t0}, s63, 7
        v_add_u32 v{FAD}, {WS_FA}, v{FAD}
        s_mul_i32 s{S_WI1}, s59, 28672
        s_add_u32 s{S_WI1}, s{S_WI1}, {WS_WI}
        s_lshl_b32 s62, s{S_I}, 18
        s_lshl_b32 s63, s{S_W}, 10
        s_add_u32 s62, s62, s63""")
        for tau in range(4): k(f"s_add_u32 s63, s{S_W}, {tau}\ns_and_b32 s63, s63, 3\ns_lshl_b32 s{S_WSP+tau}, s63, 16\ns_add_u32 s{S_WSP+tau}, s{S_WSP+tau}, s62\ns_mul_i32 s{S_ROT+tau}, s63, 7168")
        k(f"s_lshl_b32 s{S_STE}, s{S_W}, 14\ns_add_u32 s{S_STE}, s{S_STE}, 49152\ns_mul_i32 s{S_STL}, s{S_W}, 12288")
    CH=ra(28,2)
    AF=ra(64,4); BF=ra(64,4); ACC=ra(16,4)
    rb=RA(BF,BF+64)
    S=rb(); Q=rb(); T=rb(2)
    stamp(k,"s4")
    k("s_waitcnt vmcnt(10)")
    stamp(k,"tile")
    xt_store(k, AF)
    stamp(k,"xts")
    k(f"s_waitcnt vmcnt(16)")
    stamp(k,"rowsin")
    stats_compute(k,S,Q,T)
    stamp(k,"stats")
    k("s_waitcnt vmcnt(9)")
    stamp(k,"params")
    k(f"s_add_u32 s60, s38, L_TBL-L_PC0\ns_addc_u32 s61, s39, 0")
    k(f"v_lshlrev_b32 v59, 4, v0\nv_add_u32 v17, 4096, v59\nv_add_u32 v19, 12288, v59\nv_add_u32 v58, 20480, v59\nv_add_u32 v59, 24576, v59")
    for q,(r,o) in enumerate([(17,-4096),(17,0),(19,-4096),(19,0),(58,-4096),(58,0),(59,0)]):
        k(f"global_load_dwordx4 v[{V_TB+4*q}:{V_TB+4*q+3}], v{r}, s[60:61] offset:{o}")
    stamp(k,"tbl")
    DT=rb(); LG=rb(); E1=rb()
    L2E=math.log2(math.e); import struct
    Lhi=struct.unpack("<f",struct.pack("<f",L2E))[0]; Llo=L2E-Lhi
    k(f"""v_lshlrev_b32 v16, 16, v16
    s_mov_b32 s62, {fl(Lhi)}
    v_mul_f32 v{LG}, s62, v16
    v_fma_f32 v{E1}, v16, s62, -v{LG}
    v_fmac_f32 v{E1}, {fl(Llo)}, v16
    v_exp_f32 v{DT}, v{LG}
    v_mul_f32 v{E1}, {fl(math.log(2))}, v{E1}
    v_fmac_f32 v{DT}, v{DT}, v{E1}
    v_cvt_pk_bf16_f32 v{DT}, v{DT}, v{DT}""")
    M=[{},{}]
    for mk in range(2):
        for nm in ["LP","C","B","P1","P2","P3","P4","P6","P256","P512","P768","P1024"]: M[mk][nm]=rb(2)
        for q,nm in enumerate(["X","T","P8"]): M[mk][nm]=CH+6*mk+2*q
    def unp(dst, src, mk):
        return f"v_lshlrev_b32 v{dst}, 16, v{src}" if mk==0 else f"v_and_b32 v{dst}, 0xffff0000, v{src}"
    DTP=rb(2)
    k(f"v_and_b32 v{DTP}, 0xffff0000, v{DT}")
    for mk in range(2):
        m=M[mk]
        k(unp(m['LP'],V_PAR+0,mk)); k(unp(m['LP']+1,V_PAR+1,mk))
        k(unp(m['B'],V_PAR+2,mk)); k(unp(m['B']+1,V_PAR+3,mk))
        k(unp(m['C'],V_PAR+4,mk)); k(unp(m['C']+1,V_PAR+5,mk))
    k(f"s_mov_b32 s62, {fl(L2E)}\ns_mov_b32 s63, {fl(1/(2*math.pi))}")
    k(f"s_mul_i32 s59, s{S_W}, {L_AW}\ns_mov_b32 m0, s59")
    for mk in range(2):
        m=M[mk]
        k(f"v_pk_mul_f32 {vr(m['LP'],2)}, {vr(m['LP'],2)}, {vr(DTP,2)} op_sel_hi:[1,0]")
        k(f"v_pk_mul_f32 {vr(m['B'],2)}, {vr(m['B'],2)}, {vr(DTP,2)} op_sel_hi:[1,0]")
    for mk in range(2):
        m=M[mk]
        k(f"v_pk_mul_f32 {vr(m['LP'],2)}, {vr(m['LP'],2)}, s[62:63]")
        k(cmul1(m['X'],m['C'],m['B']))
    for mk in range(2):
        m=M[mk]
        k(f"v_pk_fma_f32 {vr(m['X'],2)}, {vr(m['C'],2)}, {vr(m['B'],2)}, {vr(m['X'],2)} op_sel:[1,1,0] op_sel_hi:[1,0,1] neg_lo:[1,0,0] neg_hi:[1,0,1]")
    for (nm,sc,cj) in (("P1",1.0,0),("P8",8.0,1),("P256",256.0,0)):
        for mk in range(2):
            m=M[mk]; e=m['C']; p=m['C']+1
            if sc==1.0:
                k(f"v_exp_f32 v{e}, v{m['LP']}\nv_fract_f32 v{p}, v{m['LP']+1}")
            else:
                k(f"v_mul_f32 v{e}, {fl(sc)}, v{m['LP']}\nv_mul_f32 v{p}, {fl(-sc if cj else sc)}, v{m['LP']+1}")
                k(f"v_exp_f32 v{e}, v{e}\nv_fract_f32 v{p}, v{p}")
        for mk in range(2):
            m=M[mk]; p=m['C']+1
            k(f"v_cos_f32 v{m[nm]}, v{p}\nv_sin_f32 v{m[nm]+1}, v{p}")
        for mk in range(2):
            m=M[mk]
            k(f"v_pk_mul_f32 {vr(m[nm],2)}, {vr(m[nm],2)}, {vr(m['C'],2)} op_sel:[0,0] op_sel_hi:[1,0]")
    OUT=[CH+12+2*q for q in range(8)]; oc=[0]; pend=[]
    def flush():
        for p in pend: k(p)
        pend.clear()
    def put(nm, off, pl):
        o=OUT[oc[0]%8]; oc[0]+=1
        for mk in range(2):
            if nm is None: k(f"v_mov_b32 v{o+mk}, 0x3f80")
            else: k(f"v_cvt_pk_bf16_f32 v{o+mk}, v{M[mk][nm]}, v{M[mk][nm]+1}")
            pend.append(f"ds_write_addtid_b32 v{o+mk} offset:{off+mk*pl}")
        if len(pend)>=8: flush()
    def cm(z,x,y):
        for mk in range(2): k(cmul1(M[mk][z],M[mk][x],M[mk][y]))
        for mk in range(2): k(cmul2(M[mk][z],M[mk][x],M[mk][y]))
    put(None,0,L_APL); put("P1",272,L_APL); put("P256",8*272,L_APL)
    for (z,x,y,row) in [("P2","P1","P1",2),("P3","P2","P1",3),("P4","P2","P2",4),("T","P4","P1",5),("P6","P4","P2",6),("T","P4","P3",7),
                        ("T","P256","P2",9),("P3","P256","P4",10),("T","P256","P6",11),("P512","P256","P256",12),("T","P512","P4",13),
                        ("P768","P512","P256",14),("T","P768","P4",15),("P1024","P512","P512",16),("T","P1024","P256",17),("P3","P1024","P512",18),
                        ("T","P1024","P768",19),("P3","P1024","P1024",20)]:
        cm(z,x,y); put(z,row*272,L_APL)
    flush()
    CB_=40000
    k(f"s_mul_i32 s59, s{S_W}, {L_BW}\ns_add_u32 s68, s59, {L_B0-CB_}\ns_mov_b32 m0, s68")
    for kk in range(16): k(f"ds_read_b128 {vr(AF+kk*4,4)}, v{RAa} offset:{(kk>>3)*L_APL+(kk&7)*32}")
    stamp(k,"rows")
    def stdma():
        k(f"s_mov_b32 m0, s65\ns_nop 0")
        for q in range(4): k(f"buffer_load_dwordx4 v{GA}, {WS}, s64 offen offset:{q*1024} sc1 lds")
        k(f"s_mov_b32 m0, s66\ns_nop 0")
        for q in range(4): k(f"buffer_load_dwordx4 v{GA}, {WS}, s67 offen offset:{q*1024} sc1 lds")
    cur="X"
    for r in range(32):
        if r>0:
            nxt="T" if cur=="X" else "X"
            cm(nxt,cur,"P8"); cur=nxt
        put(cur,CB_+r*272,L_BPL)
        if r==O.dmacol:
            assert not pend
            stdma()
            k(f"s_mov_b32 m0, s68")
    assert not pend
    for kk in range(16): k(f"ds_read_b128 {vr(BF+kk*4,4)}, v{RB} offset:{(kk>>3)*L_BPL+(kk&7)*32}")
    stamp(k,"chain")
    G=2
    mfq=list(range(16))
    def mfma():
        kk=mfq.pop(0)
        k(f"v_mfma_f32_32x32x16_bf16 {vr(ACC,16)}, {vr(AF+kk*4,4)}, {vr(BF+kk*4,4)}, {'0' if kk==0 else vr(ACC,16)}")
    k(f"s_mov_b32 s59, 0\ns_waitcnt vmcnt(0)")
    stamp(k,"gather")
    XG=CH+12
    def strd():
        for q in range(4): k(f"ds_read_b128 {vr(G+4*q,4)}, v{SA} offset:{16*q}")
        for q in range(4): k(f"ds_read_b128 {vr(XG+4*q,4)}, v{SA} offset:{L_KCP+16*q}")
    strd()
    k("s_waitcnt lgkmcnt(8)")
    mfma(); mfma(); mfma()
    k("L_ST1:\ns_waitcnt lgkmcnt(0)")
    k(f"v_xor_b32 v{t0}, s{S_TAG}, v{G+1}\nv_xor_b32 v{a1}, s{S_TAG}, v{XG+1}")
    for t in range(1,8): k(f"v_xad_u32 v{t0}, v{G+2*t+1}, s{S_TAG}, v{t0}\nv_xad_u32 v{a1}, v{XG+2*t+1}, s{S_TAG}, v{a1}")
    k(f"""v_or_b32 v{t0}, v{t0}, v{a1}
    v_cmp_ne_u32 vcc, 0, v{t0}
    s_cbranch_vccz L_ST1_x
    s_add_u32 s59, s59, 1
    s_cmp_gt_u32 s59, {O.spin}
    s_cbranch_scc1 L_ST1_x""")
    stdma()
    k("s_waitcnt vmcnt(0)")
    strd()
    k("s_branch L_ST1\nL_ST1_x:")
    if O.diag: k("s_mov_b32 s94, s59")
    XS=BF; UP=G; UO=V_XT
    prep=[]
    for t in range(8):
        g=G+2*t; x=XG+2*t
        prep.append(f"v_and_b32 v{x+1}, 0xffff0000, v{g}")
        prep.append(f"v_lshlrev_b32 v{g+1}, 16, v{g}")
        prep.append(f"v_rcp_f32 v{x+1}, v{x+1}")
        prep.append(f"v_lshlrev_b32 v{XS+2*t}, 16, v{x}")
        prep.append(f"v_and_b32 v{XS+2*t+1}, 0xffff0000, v{x}")
        prep.append(f"v_sub_f32 v{g}, v{XS+2*t}, v{g+1}")
        prep.append(f"v_sub_f32 v{g+1}, v{XS+2*t+1}, v{g+1}")
        prep.append(f"v_mul_f32 v{g}, v{g}, v{x+1}")
        prep.append(f"v_mul_f32 v{g+1}, v{g+1}, v{x+1}")
    for c in range(2):
        for p in range(4): prep.append(f"v_cvt_pk_bf16_f32 v{UO+4*c+p}, v{UP+4*p+c}, v{UP+4*p+2+c}")
    while mfq:
        mfma()
        for _ in range(5): k(prep.pop(0))
    for p in prep: k(p)
    EW=V_TB+19
    k(f"ds_write_b128 v{UA}, {vr(UO,4)}\nds_write_b128 v{UA}, {vr(UO+4,4)} offset:{L_UC}")
    for v in range(4): k(f"ds_write_b32 v{EW}, v{ACC+v} offset:{4*v}")
    for v in range(4,12): k(f"ds_write_b32 v{EW+v-3}, v{ACC+v}")
    k(f"""s_mul_i32 s59, s{S_W}, {L_AW}
    s_and_b32 s62, s{S_W}, 1
    s_mul_i32 s62, s62, {E_ODD}
    s_add_u32 s59, s59, s62
    v_mov_b32 v{t0}, s59
    ds_write_b32 v{t0}, v{Z+1} offset:{E_ZERO*4}""")
    DK=RAa; CW=RB; AT0=SA; AT1=GA; BA=UA; FA=a2
    k(f"""s_lshr_b32 s59, s{S_W}, 1
    s_lshl_b32 s59, s59, 4
    v_lshrrev_b32 v{DK}, s59, v18
    v_lshlrev_b32 v{DK}, 16, v{DK}
    v_and_b32 v{t0}, 127, v0
    v_cmp_eq_u32 vcc, 127, v{t0}
    v_cndmask_b32 v{DK}, 0, v{DK}, vcc
    s_waitcnt lgkmcnt(0)
    s_barrier""")
    stamp(k,"kgen")
    T=Trk(k); G2['T']=T
    GV=AF
    for x in range(19): k(f"ds_read2st64_b32 {vr(GV+2*x,2)}, v{V_TB+x} offset0:0 offset1:{(L_AW+E_ODD)//256}")
    full=O.stop>=2
    import gen2
    def wsp_dma(u, sbase, slot):
        kq,tau=divmod(u,4); out=[]
        for q in range(4):
            g=[f"s_add_u32 m0, s{sbase}, {slot*4096+q*1024}"]
            if q==0: g.append(f"s_add_u32 s71, s{S_WSP+tau}, {kq*256}")
            g.append(f"buffer_load_dwordx4 v{(gen2.gen_WD[0] or WD)+q}, s[44:47], s71 offen lds")
            out.append(g)
        return out
    G2['wsp_dma']=wsp_dma
    st1=[]
    if full:
        for u in range(O.st1): st1+= wsp_dma(u, S_STE, u) if u<4 else wsp_dma(u, S_STL, u-4)
        k(f"s_mov_b32 s44, s26\ns_mov_b32 s45, s27\ns_mov_b32 s46, {2048*4096}")
        k(f"buffer_load_dword v{a1}, v{FAD}, {WS}, 0 offen sc1"); T.mark("fa")
        for g in st1[:8]: k("\n".join(g))
        st1=st1[8:]
    CV=BF+32
    k(f"""s_lshr_b32 s59, s{S_W}, 1
    s_mul_i32 s59, s59, {L_KCC}
    s_and_b32 s62, s{S_W}, 1
    s_lshl_b32 s62, s62, 11
    s_add_u32 s59, s59, s62
    s_add_u32 s59, s59, {L_KC}
    v_lshl_add_u32 v{CW}, v{V_LANE}, 5, s59""")
    k(f"""s_lshr_b32 s59, s{S_W}, 1
    s_mul_i32 s62, s59, {L_KCC}
    s_and_b32 s63, s{S_W}, 1
    s_lshl_b32 s64, s63, 10
    s_sub_u32 s62, s62, s64
    s_add_u32 s62, s62, {L_KC+2044*2-64*15}
    v_and_b32 v{t0}, 3, v{V_LANE}
    v_mul_u32_u24 v{AT0}, {L_KCP}, v{t0}
    v_and_b32 v{t0}, 28, v{V_LANE}
    v_lshlrev_b32 v{t0}, 1, v{t0}
    v_sub_u32 v{AT0}, v{AT0}, v{t0}
    v_lshl_add_u32 v{AT0}, v{t1}, 4, v{AT0}
    v_add_u32 v{AT0}, s62, v{AT0}
    v_subrev_u32 v{AT1}, 2048, v{AT0}
    s_mul_i32 s62, s59, {L_UC}
    s_mul_i32 s64, s63, 16*80
    s_sub_u32 s62, s62, s64
    s_add_u32 s62, s62, {L_U+(U_Z-15)*80}
    v_and_b32 v{t0}, 31, v{V_LANE}
    v_mul_u32_u24 v{BA}, 80, v{t0}
    v_lshl_add_u32 v{BA}, v{t1}, 4, v{BA}
    v_add_u32 v{BA}, s62, v{BA}""")
    k("s_waitcnt lgkmcnt(9)")
    for x in range(10): k(f"v_add_f32 v{GV+2*x}, v{GV+2*x}, v{GV+2*x+1}")
    k("s_waitcnt lgkmcnt(0)")
    for x in range(10,19): k(f"v_add_f32 v{GV+2*x}, v{GV+2*x}, v{GV+2*x+1}")
    k(f"v_add_f32 v{GV+30}, v{GV+30}, v{DK}")
    for cp in (3,2,1,0):
        for h in range(2):
            for q in range(4):
                x=3-cp+2*(4*h+q)
                k(f"v_cvt_pk_bf16_f32 v{CV+cp*8+4*h+q}, v{GV+2*x}, v{GV+2*x+2}")
        for h in range(2): k(f"ds_write_b128 v{CW}, {vr(CV+cp*8+4*h,4)} offset:{cp*L_KCP+16*h}")
    LA=10
    wi2=[]
    if full:
        k(f"v_lshlrev_b32 v{LA}, 4, v{V_LANE}")
        T.wvm("fa")
        k(f"v_cmp_ne_u32 vcc, s{S_TAG}, v{a1}\ns_cbranch_vccz L_PA_x")
        poll(k, FAD, a1, "L_PA")
        for g in range(4):
            for s_ in range(7):
                a=112+(g*7+s_)*4; gr=[]
                if s_==0: gr.append(f"s_add_u32 s70, s{S_WI1}, s{S_ROT+g}\ns_add_u32 s70, s70, {28*28672}")
                if s_==4: gr.append("s_add_u32 s70, s70, 4096")
                gr.append(f"buffer_load_dwordx4 {ar(a,4)}, v{LA}, {WS}, s70 offen offset:{(s_&3)*1024} sc1")
                wi2.append(gr)
    k("s_waitcnt lgkmcnt(0)\ns_barrier")
    stamp(k,"copies")
    bg=[]
    while st1 or wi2:
        if wi2: bg.append(wi2.pop(0))
        if st1: bg.append(st1.pop(0))
    Y0=ACC; Y1=BF+16
    def rd(u):
        mp,ks=divmod(u,2); b=AF+(u%4)*16; o=64*(15-mp)+32*ks
        return [f"ds_read_b64 {vr(b,2)}, v{AT0} offset:{o}", f"ds_read_b64 {vr(b+2,2)}, v{AT0} offset:{o+8}",
                f"ds_read_b128 {vr(b+8,4)}, v{BA} offset:{(15-mp)*80+32*ks}", f"ds_read_b128 {vr(b+12,4)}, v{BA} offset:{(15-mp)*80+32*ks+2560}",
                f"ds_read_b64 {vr(b+4,2)}, v{AT1} offset:{o}", f"ds_read_b64 {vr(b+6,2)}, v{AT1} offset:{o+8}"]
    for x in rd(0)+rd(1): k(x)
    YA=CW; YR=DK; HA=FA
    post=[f"s_mul_i32 s59, s{S_W}, {L_YW}", f"s_add_u32 s59, s59, {L_Y}", f"v_and_b32 v{t0}, 31, v{V_LANE}", f"v_mul_u32_u24 v{YA}, 144, v{t0}", f"v_lshl_add_u32 v{YA}, v{t1}, 4, v{YA}",
      f"v_add_u32 v{YA}, s59, v{YA}", f"v_lshrrev_b32 v{t0}, 2, v0", f"v_mul_u32_u24 v{YR}, 144, v{t0}", f"v_and_b32 v{t0}, 3, v0",
      f"v_lshl_add_u32 v{YR}, v{t0}, 5, v{YR}", f"v_add_u32 v{YR}, {L_Y}, v{YR}", f"v_lshrrev_b32 v{t0}, 3, v0", f"v_mul_u32_u24 v{HA}, 57344, v{t0}", f"s_and_b32 s59, s{S_M}, 1",
      f"s_lshl_b32 s59, s59, 2", f"v_and_b32 v{t0}, 7, v0", f"v_xor_b32 v{t0}, s59, v{t0}", f"v_lshl_add_u32 v{HA}, v{t0}, 4, v{HA}",
      f"s_lshl_b32 s62, s{S_M}, 8", f"s_add_u32 s62, s62, {WS_HT}",
      f"s_lshl_b32 s59, s{S_M}, 2", f"s_add_u32 s59, s59, s{S_W}", f"s_lshl_b32 s59, s59, 7", f"s_add_u32 s63, s59, {WS_FH}"]
    if full:
        import gen2
        post+=gen2.conv_shadow_ops()
    nbg=len(bg); done=0; NU=O.bgu
    for u in range(32):
        b=AF+(u%4)*16
        R=rd(u+2) if u<30 else []
        k(f"s_waitcnt lgkmcnt({6 if u<31 else 0})")
        c0='0' if u==0 else vr(Y0,16); c1='0' if u==0 else vr(Y1,16)
        k(f"v_mfma_f32_32x32x16_bf16 {vr(Y0,16)}, {vr(b,4)}, {vr(b+8,4)}, {c0}")
        for x in R[:3]: k(x)
        if post: k(post.pop(0))
        k(f"v_mfma_f32_32x32x16_bf16 {vr(Y1,16)}, {vr(b,4)}, {vr(b+12,4)}, {c1}")
        for x in R[3:]: k(x)
        if post: k(post.pop(0))
        k(f"v_mfma_f32_32x32x16_bf16 {vr(Y1,16)}, {vr(b+4,4)}, {vr(b+8,4)}, {vr(Y1,16)}")
        want=min(nbg,-(-nbg*(u+1)//NU))
        n=0
        while done<want: k("\n".join(bg[done])); done+=1; n+=1
        if n==0 and post: k(post.pop(0))
    assert done==nbg
    for x in post: k(x)
    T.mark("bgc")
    stamp(k,"conv")
    k("s_barrier")
    for q in range(4): k(f"ds_write_b128 v{YA}, {vr(Y0+4*q,4)} offset:{32*q}")
    for q in range(4): k(f"ds_write_b128 v{YA}, {vr(Y1+4*q,4)} offset:{32*q+4608}")
    k("s_waitcnt lgkmcnt(0)\ns_barrier")
    YV=AF
    for c in range(2):
        for mh in range(2):
            for h in range(2): k(f"ds_read_b128 {vr(YV+c*16+mh*8+4*h,4)}, v{YR} offset:{(2*c+mh)*L_YW+16*h}")
    HO=BF+32
    for c in range(2):
        k(f"s_waitcnt lgkmcnt({4 if c==0 else 0})")
        y=YV+c*16
        for p in range(4): k(f"v_pk_add_f32 {vr(y+2*p,2)}, {vr(y+2*p,2)}, {vr(y+8+2*p,2)}")
        for t in range(8): k(f"v_add_f32 v{y+t}, v{y+t}, v{XS+2*t+c}")
        for p in range(4): k(f"v_cvt_pk_bf16_f32 v{HO+4*c+p}, v{y+2*p}, v{y+2*p+1}")
        k(f"buffer_store_dwordx4 {vr(HO+4*c,4)}, v{HA}, {WS}, s62 offen offset:{128*c} sc1")
    T.mark("hst")
    stamp(k,"hissue")
    G2.update(WD=WD, t0=t0, LA=LA)
    if not full:
        k("s_waitcnt vmcnt(0)")
        stamp(k,"hstored")
        flag(k,63,t0)

def aux(k):
    k("L_AUX:\ns_waitcnt lgkmcnt(0)")
    astamp(k,"karg")
    early_load(k)
    k(f"""s_lshl_b32 s{S_M}, s{S_XCD}, 2
    s_add_u32 s{S_M}, s{S_M}, s{S_IDX}
    s_sub_u32 s{S_M}, s{S_M}, 28
    v_and_b32 v{V_LANE}, 63, v0
    s_cmp_ge_u32 s{S_M}, 28
    s_cbranch_scc1 L_AUX_ST""")
    k(f"s_mov_b32 s64, s24\ns_mov_b32 s65, s25\ns_mov_b32 s66, {448*1792*2}\ns_mov_b32 s67, 0x20000")
    k(f"s_mov_b32 s48, s30\ns_mov_b32 s49, s31\ns_mov_b32 s50, {896*448*2}\ns_mov_b32 s51, 0x20000")
    k(f"""v_lshrrev_b32 v28, 3, v{V_LANE}
    s_mul_i32 s59, s{S_W}, 112
    v_add_u32 v28, s59, v28
    v_mul_u32_u24 v28, 3584, v28
    v_bfe_u32 v29, v{V_LANE}, 4, 1
    v_lshlrev_b32 v29, 2, v29
    v_and_b32 v30, 7, v{V_LANE}
    v_xor_b32 v29, v29, v30
    v_lshl_add_u32 v28, v29, 4, v28
    s_lshl_b32 s62, s{S_M}, 7
    s_mul_i32 s63, s{S_W}, 14336""")
    def wdma(): k(f"s_mov_b32 m0, s63\ns_add_u32 s63, s63, 1024\nbuffer_load_dwordx4 v28, s[64:67], s62 offen lds\ns_add_u32 s62, s62, 28672")
    NE=4
    for q in range(NE): wdma()
    k(f"""v_bfe_u32 v32, v{V_LANE}, 2, 2
    v_lshrrev_b32 v33, 5, v{V_LANE}
    v_lshl_add_u32 v33, v33, 3, v32
    v_lshlrev_b32 v33, 7, v33
    v_bfe_u32 v34, v{V_LANE}, 4, 1
    v_lshlrev_b32 v34, 1, v34
    v_bfe_u32 v35, v{V_LANE}, 1, 1
    v_add_u32 v34, v34, v35
    v_bfe_u32 v35, v{V_LANE}, 3, 1
    v_lshlrev_b32 v35, 2, v35
    v_xor_b32 v34, v34, v35
    v_lshl_add_u32 v33, v34, 4, v33
    v_and_b32 v35, 1, v{V_LANE}
    v_lshl_add_u32 v33, v35, 3, v33
    s_mul_i32 s59, s{S_W}, 14336
    v_add_u32 v33, s59, v33
    v_xor_b32 v34, 64, v33
    v_lshlrev_b32 v29, 4, v{V_LANE}
    s_mul_i32 s68, s{S_M}, {2*28672}
    s_mul_i32 s59, s{S_W}, 7168
    s_add_u32 s68, s68, s59
    s_add_u32 s68, s68, {WS_WI}
    s_add_u32 s71, s68, 28672
    s_waitcnt vmcnt({NE+2})""")
    astamp(k,"tile")
    xt_store(k, 130)
    k(f"s_waitcnt vmcnt({NE+8})")
    stats_compute(k,30,31,36)
    astamp(k,"stats")
    for q in range(NE,14): wdma()
    k(f"""s_mul_i32 s62, s{S_M}, 28672
    s_mul_i32 s63, s{S_W}, 7168
    s_add_u32 s62, s62, s63
    s_add_u32 s63, s63, 57344""")
    for q in range(7):
        k(f"s_mov_b32 m0, s63\ns_add_u32 s63, s63, 1024\nbuffer_load_dwordx4 v29, s[48:51], s62 offen lds\ns_add_u32 s62, s62, 1024")
    astamp(k,"dmaiss")
    F=40
    for q in range(7):
        last=2*q+1
        after = (13-last) + 7 + (9 if last<NE else 0) + 2*q
        k(f"s_waitcnt vmcnt({after})")
        for T in range(2):
            for p in range(2): k(f"ds_read_b64_tr_b16 {vr(F+8*q+4*T+2*p,2)}, v{33+T} offset:{q*2048+p*512}")
        k("s_waitcnt lgkmcnt(0)")
        o=(q&3)*1024
        k(f"buffer_store_dwordx4 {vr(F+8*q,4)}, v29, {WS}, s68 offen offset:{o} sc1")
        k(f"buffer_store_dwordx4 {vr(F+8*q+4,4)}, v29, {WS}, s71 offen offset:{o} sc1")
        if q==3: k("s_add_u32 s68, s68, 4096\ns_add_u32 s71, s71, 4096")
        for e in range(4):
            for T in range(2): k(f"v_dot2_f32_bf16 v{30+T}, v{F+8*q+4*T+e}, s{S_ONE}, {'0' if q==0 and e==0 else 'v%d'%(30+T)}")
    astamp(k,"wiiss")
    k(f"""v_permlane32_swap_b32 v30, v31
    v_add_f32 v30, v30, v31
    v_lshlrev_b32 v31, 2, v0
    v_add_u32 v31, 90112, v31
    ds_write_b32 v31, v30
    v_lshlrev_b32 v31, 2, v{V_LANE}
    v_add_u32 v32, 90112, v31
    v_lshrrev_b32 v24, 2, v{V_LANE}
    v_mul_u32_u24 v24, 896, v24
    v_and_b32 v25, 3, v{V_LANE}
    v_lshl_add_u32 v24, v25, 4, v24
    v_add_u32 v24, 57344, v24
    s_waitcnt vmcnt(14) lgkmcnt(0)
    s_barrier
    s_cmp_lg_u32 s{S_W}, 0
    s_cbranch_scc1 L_AUX_NOCS
    ds_read_b32 v36, v32 offset:256
    ds_read_b32 v37, v32 offset:512
    ds_read_b32 v38, v32 offset:768
    s_lshl_b32 s59, s{S_M}, 8
    s_add_u32 s59, s59, {WS_CS}
    s_waitcnt lgkmcnt(0)
    v_add_f32 v30, v30, v36
    v_add_f32 v37, v37, v38
    v_add_f32 v30, v30, v37
    buffer_store_dword v30, v31, {WS}, s59 offen sc1
    L_AUX_NOCS:""")
    G=100
    for q in range(7):
        k(f"s_mul_i32 s59, s{S_W}, 7\ns_add_u32 s59, s59, {q}\ns_lshr_b32 s62, s59, 1\ns_lshl_b32 s62, s62, 6\ns_and_b32 s59, s59, 1\ns_lshl_b32 s59, s59, 3\ns_add_u32 s59, s59, s62\nv_add_u32 v25, s59, v24")
        for p in range(2): k(f"ds_read_b64_tr_b16 {vr(G+4*q+2*p,2)}, v25 offset:{p*16*896}")
    k(f"""s_lshl_b32 s63, s{S_M}, 7
    s_add_u32 s63, s63, {WS_FA}
    s_waitcnt vmcnt(0)
    s_barrier
    s_cmp_lg_u32 s{S_W}, 0
    s_cbranch_scc1 L_AUX_NF1""")
    flag(k,63,30)
    k("L_AUX_NF1:\ns_waitcnt lgkmcnt(0)")
    astamp(k,"wiflag")
    for q in range(7):
        k(f"""s_mul_i32 s59, s{S_W}, 7
        s_add_u32 s59, s59, {q}
        s_lshr_b32 s62, s59, 2
        s_and_b32 s59, s59, 3
        s_mul_i32 s62, s62, 28
        s_add_u32 s62, s62, s{S_M}
        s_lshl_b32 s62, s62, 2
        s_add_u32 s62, s62, s59
        s_lshl_b32 s62, s62, 10
        s_add_u32 s62, s62, {WS_WO}
        buffer_store_dwordx4 {vr(G+4*q,4)}, v29, {WS}, s62 offen sc1""")
    k(f"""s_add_u32 s63, s63, 4096
    s_waitcnt vmcnt(0)
    s_barrier""")
    astamp(k,"wo")
    k(f"""s_cmp_lg_u32 s{S_W}, 0
    s_cbranch_scc1 L_FIN""")
    flag(k,63,30)
    k("s_branch L_FIN\nL_AUX_ST:\ns_waitcnt vmcnt(0)")
    xt_store(k, 130)
    stats_compute(k,30,31,36)
    k("s_branch L_FIN")

def table():
    T=[[0]*28 for _ in range(256)]
    for tid in range(256):
        w=tid>>6; lane=tid&63; c=w>>1; g=(w&1)*64+lane
        for x in range(19):
            lag=2047-16*g-x
            dw=E_ZERO if lag<0 else pad(rnd_bf16_int(lag))
            T[tid][x]=2*c*L_AW+4*dw
        r=lane&31; hh=lane>>5
        eb=w*L_AW+(w&1)*E_ODD
        def ea(v):
            row=8*(v>>2)+4*hh+(v&3)
            return eb+4*(8*r+(r>>1)+(pad(UROWS[row]) if row<len(UROWS) else E_DUMMY))
        T[tid][19]=ea(0)
        for v in range(4,12): T[tid][19+v-3]=ea(v)
    out=[]
    for blk in range(7):
        for tid in range(0,256,2):
            out.append(".long "+",".join(str(T[t][4*blk+e]) for t in (tid,tid+1) for e in range(4)))
    return out

def build(path):
    O.stamps=[]; O.astamps=['start']; nstamp[0]=0
    k=K(NAME, vgpr=256, agpr=256, sgpr=102)
    entry(k)
    main_part1(k)
    if O.stop>=2:
        import gen2
        gen2.rest(k)
    stamp(k,"end")
    k("L_FIN:")
    if O.exp==4:
        k(f"""s_cmp_ge_u32 s{S_IDX}, 28
        s_cbranch_scc1 L_SPY_x
        s_memtime s[60:61]
        s_waitcnt lgkmcnt(0)
        s_sub_u32 s64, s74, s72
        s_min_u32 s64, s64, 200000
        s_mul_i32 s64, s64, 10
        L_SPY:
        s_memtime s[62:63]
        s_waitcnt lgkmcnt(0)
        s_sub_u32 s62, s62, s60
        s_cmp_lt_u32 s62, s64
        s_cbranch_scc1 L_SPY
        L_SPY_x:""")
    else: dump_stamps(k)
    k(f"""s_or_b32 s59, s2, s{S_W}
    s_cmp_lg_u32 s59, 0
    s_cbranch_scc1 L_END
    s_mov_b32 s59, 0""")
    flag(k,59,4)
    k("s_waitcnt vmcnt(0)\nL_END:\ns_endpgm")
    aux(k)
    L,tot=hz.fix(k.L)
    k.L=L+[".p2align 8","L_TBL:"]+table()
    s=HEADER+"; @launch grid=(256,1,1) block=(256,1,1) lds=163840\n"
    s+='.amdgcn_target "amdgcn-amd-amdhsa--gfx950"\n.text\n'+k.text()+'.section .rodata,"a"\n'+k.kd()
    open(path,"w").write(s)
    open(path[:-2]+".stamps","w").write(repr((O.stamps,O.astamps)))
    print(path,"lines",len(k.L),"hazard nops",tot)
if __name__=="__main__":
    import argparse
    ap=argparse.ArgumentParser(); ap.add_argument("out"); ap.add_argument("--stop",type=int,default=99); ap.add_argument("--diag",action="store_true"); ap.add_argument("--dout",action="store_true"); ap.add_argument("--exp",type=int,default=0); ap.add_argument("--only",default="")
    a=ap.parse_args(); O.stop=a.stop; O.diag=a.diag; O.dout=a.dout; O.exp=a.exp; O.only=[x for x in a.only.split(',') if x]
    sys.modules["gen"]=sys.modules["__main__"]
    build(a.out)
```
